```python
import torch

def _softmax(x, axis=-1):
    return torch.softmax(x, dim=axis)
def _gelu(x):
    return torch.nn.functional.gelu(x, approximate="tanh")
def _silu(x):
    return torch.nn.functional.silu(x)
def _sigmoid(x):
    return torch.sigmoid(x)
def _layernorm(x, axis=-1, eps=1e-5):
    m = x.mean(dim=axis, keepdim=True)
    v = x.var(dim=axis, keepdim=True, unbiased=False)
    return (x - m) / torch.sqrt(v + eps)
def _scatter_add(tgt, idx, src, axis=0):
    return tgt.clone().index_add_(axis, idx, src)
def _segment_sum(src, seg, n):
    out = torch.zeros((n,) + src.shape[1:], dtype=src.dtype)
    return out.index_add_(0, seg, src)
def _pad(x, pw):
    flat = tuple(v for pair in reversed(pw) for v in pair)
    return torch.nn.functional.pad(x, flat)

kernel_name = 'concat_heads__mha_block__ssm_conv_s5__prompt'

def setup_inputs():

    _w = (lambda a: (lambda t: t.to(torch.bfloat16) if t.is_floating_point() else t)(torch.as_tensor(a)))
    def _A_setup():
        B, S, D, H = 1, 2048, 640, 32
        return {
            "x": _w((lambda *s: torch.randn(*s, dtype=torch.bfloat16) * 0.2)(B, S, D)),
            "wqkv": _w((lambda *s: torch.randn(*s, dtype=torch.bfloat16) * 0.2)(D, 3 * D)),
            "wo": _w((lambda *s: torch.randn(*s, dtype=torch.bfloat16) * 0.05)(D, D)),
        }
    _A_in = _A_setup()

    def _B_setup():
        B, S, D = 1, 2048, 640
        P = D
        Lambda_re = -0.5 * (lambda _x: torch.exp(torch.as_tensor(_x)))((lambda *s: torch.randn(*s, dtype=torch.bfloat16) * 0.8)(P))
        Lambda_im = (lambda *s: torch.randn(*s, dtype=torch.bfloat16) * 0.8)(P) * 1.0
        B_re = (lambda *s: torch.randn(*s, dtype=torch.bfloat16) * 0.8)(P, D) * (D ** -0.5)
        B_im = (lambda *s: torch.randn(*s, dtype=torch.bfloat16) * 0.8)(P, D) * (D ** -0.5)
        C_re = (lambda *s: torch.randn(*s, dtype=torch.bfloat16) * 0.8)(D, P) * (P ** -0.5)
        C_im = (lambda *s: torch.randn(*s, dtype=torch.bfloat16) * 0.8)(D, P) * (P ** -0.5)
        log_dt = (lambda *s: torch.randn(*s, dtype=torch.bfloat16) * 0.8)(P) * 0.3 - 2.0
        Dskip = (lambda *s: torch.randn(*s, dtype=torch.bfloat16) * 0.8)(D)
        return {
            "x": _w((lambda *s: torch.randn(*s, dtype=torch.bfloat16) * 0.05)(B, S, D)),
            "Lambda_re": _w(Lambda_re),
            "Lambda_im": _w(Lambda_im),
            "B_re": _w(B_re),
            "B_im": _w(B_im),
            "C_re": _w(C_re),
            "C_im": _w(C_im),
            "log_dt": _w(log_dt),
            "Dskip": _w(Dskip),
        }
    _B_in = _B_setup()

    return {
        "A_x": _A_in["x"],
        "A_wqkv": _A_in["wqkv"],
        "A_wo": _A_in["wo"],
        "B_x": _B_in["x"],
        "B_Lambda_re": _B_in["Lambda_re"],
        "B_Lambda_im": _B_in["Lambda_im"],
        "B_B_re": _B_in["B_re"],
        "B_B_im": _B_in["B_im"],
        "B_C_re": _B_in["C_re"],
        "B_C_im": _B_in["C_im"],
        "B_log_dt": _B_in["log_dt"],
        "B_Dskip": _B_in["Dskip"],
    }

def reference(A_x, A_wqkv, A_wo, B_x, B_Lambda_re, B_Lambda_im, B_B_re, B_B_im, B_C_re, B_C_im, B_log_dt, B_Dskip):
    def _A_ref(x, wqkv, wo):
        B, S, D = x.shape
        H = 32
        Dh = D // H
        qkv = (lambda x, *d: x.permute(*d))((x @ wqkv).reshape(B, S, 3, H, Dh), 2, 0, 3, 1, 4)
        q, k, v = qkv[0], qkv[1], qkv[2]
        scores = torch.einsum("bhqd,bhkd->bhqk", q, k) * (Dh ** -0.5)
        p = _softmax(scores, axis=-1)
        o = torch.einsum("bhqk,bhkd->bhqd", p, v)
        return (lambda x, *d: x.permute(*d))(o, 0, 2, 1, 3).reshape(B, S, D) @ wo

    def _B_ref(x, Lambda_re, Lambda_im, B_re, B_im, C_re, C_im, log_dt, Dskip):
        Bsz, L, H = x.shape
        Lam = Lambda_re + 1j * Lambda_im
        Bmat = B_re + 1j * B_im
        Cmat = C_re + 1j * C_im
        dt = torch.exp(log_dt)
        Lam_bar = torch.exp(dt * Lam)
        B_bar = ((Lam_bar - 1.0) / Lam)[:, None] * Bmat
        Bu = torch.einsum("bld,pd->blp", x + 0j, B_bar)
        h = torch.zeros_like(Bu[:, 0, :])
        hs = []
        for t in range(L):
            h = Lam_bar[None, :] * h + Bu[:, t, :]
            hs.append(h)
        hseq = torch.stack(hs, 1)
        y = 2.0 * torch.einsum("blp,dp->bld", hseq, Cmat).real + x * Dskip[None, None, :]
        return y

    a = _A_ref(A_x, A_wqkv, A_wo)
    b = _B_ref(B_x, B_Lambda_re, B_Lambda_im, B_B_re, B_B_im, B_C_re, B_C_im, B_log_dt, B_Dskip)
    return torch.concatenate([a, b], axis=-1)
```

```python
def v(i, n=1):
    return f"v{i}" if n == 1 else f"v[{i}:{i+n-1}]"
def s(i, n=1):
    return f"s{i}" if n == 1 else f"s[{i}:{i+n-1}]"

class Asm:
    def __init__(self):
        self.lines = []
        self.uid = 0
    def __call__(self, text):
        for ln in text.strip("\n").split("\n"):
            ln = ln.strip()
            if not ln:
                continue
            if ln.endswith(":") or ln.startswith("."):
                self.lines.append(ln)
            else:
                self.lines.append("    " + ln)
    def c(self, text):
        self.lines.append("    ; " + text)
    def label(self, base):
        self.uid += 1
        return f"L{base}_{self.uid}"
    def text(self):
        return "\n".join(self.lines) + "\n"
    def srd(self, d, base, nbytes, off=None):
        if off is None:
            self(f"s_mov_b32 {s(d)}, {s(base)}\ns_mov_b32 {s(d+1)}, {s(base+1)}")
        else:
            self(f"s_add_u32 {s(d)}, {s(base)}, {off}\ns_addc_u32 {s(d+1)}, {s(base+1)}, 0")
        self(f"s_mov_b32 {s(d+2)}, {nbytes}\ns_mov_b32 {s(d+3)}, 0x00020000")

class Regs:
    def __init__(self, start=0, limit=256):
        self.next = start; self.limit = limit; self.names = {}
    def alloc(self, name, n=1, align=1):
        if n >= 2: align = max(align, 2)
        self.next = (self.next + align - 1) // align * align
        r = self.next
        self.next += n
        assert self.next <= self.limit, f"out of regs at {name}: {self.next}"
        self.names[name] = (r, n)
        return r

def kernel_header(name):
    return f""".text
.globl {name}
.p2align 8
.type {name},@function
{name}:
"""
def kernel_desc(name, vgpr=256, sgpr=96):
    acc = min(256, (vgpr + 3) // 4 * 4)
    return f""".section .rodata,"a"
.p2align 6
.amdhsa_kernel {name}
  .amdhsa_next_free_vgpr {vgpr}
  .amdhsa_next_free_sgpr {sgpr}
  .amdhsa_accum_offset {acc}
  .amdhsa_group_segment_fixed_size 0
  .amdhsa_kernarg_size 120
  .amdhsa_user_sgpr_count 2
  .amdhsa_user_sgpr_kernarg_segment_ptr 1
  .amdhsa_system_sgpr_workgroup_id_x 1
.end_amdhsa_kernel
"""
```

```python
from fcommon import *
S_TC, S_CG, S_I0, S_I1 = 38, 39, 42, 43

class A1:
    def __init__(self, a):
        self.a = a
        R = Regs(8)
        self.ax = [R.alloc(f"ax{i}", 2) for i in range(2)]
        self.aw = [R.alloc(f"aw{i}", 4) for i in range(2)]
        self.t = R.alloc("t", 8, 4)
        self.F = [R.alloc(f"F{b}", 32, 4) for b in range(2)]
        self.acc = R.alloc("acc", 64, 4)
        self.X = R.alloc("X", 40, 4)
        self.nn = R.alloc("nn", 2)
    def setup(self):
        a = self.a; t = self.t; ax = self.ax; aw = self.aw
        a(f"""
        s_and_b32 s52, {s(S_W)}, 1
        s_lshr_b32 s53, {s(S_W)}, 1
        v_and_b32 {v(t)}, 15, {v(VL)}
        v_lshrrev_b32 {v(t+1)}, 4, {v(VL)}
        v_lshrrev_b32 {v(t+2)}, 1, {v(t)}
        v_xor_b32 {v(t+2)}, {v(t+2)}, {v(t+1)}
        v_lshlrev_b32 {v(t+2)}, 4, {v(t+2)}
        v_lshl_add_u32 {v(t+2)}, {v(t)}, 7, {v(t+2)}
        s_lshl_b32 s54, s52, 13
        s_add_u32 s54, s54, {L_RING}
        v_add_u32 {v(ax[0])}, s54, {v(t+2)}
        v_xor_b32 {v(ax[0]+1)}, 64, {v(ax[0])}
        v_bfe_u32 {v(t+2)}, {v(VL)}, 2, 2
        v_lshl_add_u32 {v(t+3)}, {v(t+1)}, 3, {v(t+2)}
        v_lshlrev_b32 {v(t+3)}, 8, {v(t+3)}
        v_bfe_u32 {v(t+2)}, {v(VL)}, 2, 3
        s_lshl_b32 s54, s53, 2
        v_xor_b32 {v(t+2)}, s54, {v(t+2)}
        v_lshl_add_u32 {v(t+3)}, {v(t+2)}, 5, {v(t+3)}
        v_and_b32 {v(t+2)}, 3, {v(VL)}
        v_lshl_add_u32 {v(t+3)}, {v(t+2)}, 3, {v(t+3)}
        v_add_u32 {v(aw[0])}, {L_RING + 16384}, {v(t+3)}
        v_xor_b32 {v(aw[0]+1)}, 32, {v(aw[0])}
        v_xor_b32 {v(aw[0]+2)}, 64, {v(aw[0])}
        v_xor_b32 {v(aw[0]+3)}, 0x60, {v(aw[0])}
        """)
        for j in range(2): a(f"v_add_u32 {v(ax[1]+j)}, 0x10000, {v(ax[0]+j)}")
        for j in range(4): a(f"v_add_u32 {v(aw[1]+j)}, 0x10000, {v(aw[0]+j)}")
    def reads(self, step):
        st, ks = divmod(step, 2); slot = st % 3; F = self.F[step & 1]
        base = (slot & 1) * 32768; se = slot // 2; out = []
        for i in range(4):
            out.append(f"ds_read_b128 {v(F+4*i,4)}, {v(self.ax[se]+ks)} offset:{base + 2048*i}")
            for j in range(2):
                out.append(f"ds_read_b64_tr_b16 {v(F+16+4*i+2*j,2)}, {v(self.aw[se]+i)} offset:{base + 8192*ks + 1024*j}")
        return out
    def mf(self, step, vmode):
        F = self.F[step & 1]; out = []
        for tt in range(4):
            for ct in (range(4) if tt % 2 == 0 else range(3, -1, -1)):
                d = self.acc + 16 * tt + 4 * ct
                A, B = (F + 4*tt, F + 16 + 4*ct) if vmode else (F + 16 + 4*ct, F + 4*tt)
                out.append(f"v_mfma_f32_16x16x32_bf16 {v(d,4)}, {v(A,4)}, {v(B,4)}, {'0' if step == 0 else v(d,4)}")
        return out
    def loop(self, vmode):
        a = self.a
        for step in range(21):
            if step: a("s_waitcnt lgkmcnt(0)")
            if step % 2 == 0: a("s_barrier")
            if step == 0: stamp(a, 1)
            rd = self.reads(step) if step < 20 else []
            mm = self.mf(step - 1, vmode) if step else []
            for i in range(16):
                for x in rd[2*i:2*i+2]: a(x)
                if i < len(mm): a(mm[i])
            if step == 17:
                self.cprep_load2()
    def epilogue(self, vmode):
        a = self.a; t = self.t; acc = self.acc; pk = self.F[0]
        a(f"s_lshl_b32 s54, {s(S_I0)}, 1\ns_add_u32 s54, s54, s52\ns_lshl_b32 s54, s54, 1")
        if not vmode:
            a(f"""
            s_cmp_lt_u32 {s(S_I1)}, 5
            s_cselect_b32 s55, {QREC}, 0
            s_cselect_b32 s57, 0, {KVREC}
            s_add_u32 s55, s55, s57
            s_cmp_lt_u32 {s(S_I1)}, 5
            s_cselect_b32 s57, 0, {WS_KV - 5*32*256}
            s_cselect_b32 s60, {QSCALE}, 1.0
            s_mov_b32 s61, s60
            s_mul_i32 s58, s54, s55
            s_add_u32 s58, s58, s57
            s_lshl_b32 s57, {s(S_I1)}, 1
            s_add_u32 s57, s57, s53
            s_lshl_b32 s57, s57, 12
            s_add_u32 s58, s58, s57
            s_add_u32 s59, s58, s55
            v_lshlrev_b32 {v(t+1)}, 8, {v(t+1)}
            v_lshl_add_u32 {v(t)}, {v(t)}, 3, {v(t+1)}
            """)
            for tt in range(4):
                for ct in range(4):
                    d = acc + 16 * tt + 4 * ct; p = pk + 8 * tt + 2 * ct
                    a(f"v_pk_mul_f32 {v(d,2)}, {v(d,2)}, s[60:61]\nv_pk_mul_f32 {v(d+2,2)}, {v(d+2,2)}, s[60:61]")
                    a(f"v_cvt_pk_bf16_f32 {v(p)}, {v(d)}, {v(d+1)}\nv_cvt_pk_bf16_f32 {v(p+1)}, {v(d+2)}, {v(d+3)}")
                    a(f"buffer_store_dwordx2 {v(p,2)}, {v(t)}, {s(SW,4)}, {s(58+(tt>>1))} offen offset:{1024*ct + 128*(tt&1)} sc1")
            return 16
        a(f"""
        s_mul_i32 s58, s54, {KVREC}
        s_lshl_b32 s57, {s(S_I1)}, 1
        s_add_u32 s57, s57, s53
        s_sub_u32 s57, s57, 20
        s_lshl_b32 s55, s57, 7
        s_add_u32 s60, s58, s55
        s_add_u32 s60, s60, {WS_KV + 81920}
        s_lshl_b32 s57, s57, 10
        s_add_u32 s58, s58, s57
        s_add_u32 s58, s58, {WS_KV + 40960}
        s_add_u32 s59, s58, {KVREC}
        v_mul_u32_u24 {v(t+1)}, 10240, {v(t+1)}
        v_lshl_add_u32 {v(t)}, {v(t)}, 4, {v(t+1)}
        v_lshrrev_b32 {v(t+2)}, 5, {v(VL)}
        v_mul_u32_u24 {v(t+2)}, {KVREC - 128}, {v(t+2)}
        v_lshl_add_u32 {v(t+2)}, {v(VL)}, 2, {v(t+2)}
        v_mov_b32 {v(t+3)}, 0x3f803f80
        buffer_store_dword {v(t+3)}, {v(t+2)}, {s(SW,4)}, s60 offen sc1
        """)
        for u in range(2):
            for ct in range(4):
                p = pk + 16 * u + 4 * ct
                for h in range(2):
                    d = acc + 16 * (2*u + h) + 4 * ct
                    a(f"v_cvt_pk_bf16_f32 {v(p+2*h)}, {v(d)}, {v(d+1)}\nv_cvt_pk_bf16_f32 {v(p+2*h+1)}, {v(d+2)}, {v(d+3)}")
                a(f"buffer_store_dwordx4 {v(p,4)}, {v(t)}, {s(SW,4)}, {s(58+u)} offen offset:{256*ct} sc1")
        return 9
    def cprep_addr(self):
        a = self.a; X = self.X
        for it in range(2):
            u, c, d = X + 16 + 4 * it, X + 17 + 4 * it, X + 18 + 4 * it
            a(f"""
            s_lshl_b32 s60, {s(S_W)}, 2
            s_add_u32 s60, s60, {16*it}
            v_lshrrev_b32 {v(u)}, 4, {v(VL)}
            v_add_u32 {v(u)}, s60, {v(u)}
            v_min_u32 {v(u)}, 24, {v(u)}
            s_mul_i32 s60, {s(S_TC)}, 25
            v_add_u32 {v(u)}, s60, {v(u)}
            v_mul_u32_u24 {v(d)}, 3277, {v(u)}
            v_lshrrev_b32 {v(d)}, 16, {v(d)}
            v_mul_u32_u24 {v(c)}, 20, {v(d)}
            v_sub_u32 {v(c)}, {v(u)}, {v(c)}
            v_and_b32 {v(d+1)}, 15, {v(VL)}
            v_lshl_add_u32 {v(u)}, {v(d)}, 4, {v(d+1)}
            v_mul_u32_u24 {v(u)}, 1280, {v(u)}
            v_lshl_add_u32 {v(u)}, {v(c)}, 3, {v(u)}
            v_mul_u32_u24 {v(d)}, {HREC}, {v(d)}
            v_lshl_add_u32 {v(d)}, {v(c)}, 8, {v(d)}
            v_lshl_add_u32 {v(d)}, {v(d+1)}, 4, {v(d)}
            v_lshlrev_b32 {v(c)}, 5, {v(c)}
            """)
        a.srd(48, P_CRE, 640 * 1280); a.srd(56, P_CIM, 640 * 1280)
        a(f"s_mul_i32 s62, {s(S_CG)}, 160\nv_mov_b32 {v(self.nn)}, 0")
    def cprep_load2(self):
        a = self.a; X = self.X
        for j, S in enumerate((48, 56)):
            for it in range(2):
                a(f"buffer_load_dwordx2 {v(X+4*it+2*j,2)}, {v(X+16+4*it)}, {s(S,4)}, s62 offen")
        a(f"buffer_load_dword {v(self.nn+1)}, {v(self.nn)}, {s(SD,4)}, 0 offen sc1")
    def cprep_calc(self):
        a = self.a; t = self.t; X = self.X; K = X + 24
        a(f"s_mul_i32 s60, {s(S_CG)}, {20*256}\ns_add_u32 s60, s60, {WS_C}")
        for it in range(2):
            a(f"ds_read_b128 {v(K+8*it,4)}, {v(X+17+4*it)} offset:{L_COEF}\nds_read_b128 {v(K+8*it+4,4)}, {v(X+17+4*it)} offset:{L_COEF+16}")
        for it in range(2):
            a(f"s_waitcnt lgkmcnt({2-2*it})")
            o = X + 8 + 4 * it
            for i in range(4):
                re = X + 4 * it + (i >> 1); im = re + 2
                if i & 1: a(f"v_and_b32 {v(t+4)}, 0xffff0000, {v(re)}\nv_and_b32 {v(t+5)}, 0xffff0000, {v(im)}")
                else: a(f"v_lshlrev_b32 {v(t+4)}, 16, {v(re)}\nv_lshlrev_b32 {v(t+5)}, 16, {v(im)}")
                kr, ki = K + 8*it + 2 * i, K + 8*it + 2 * i + 1
                a(f"""
                v_mul_f32 {v(t+6)}, {v(t+4)}, {v(kr)}
                v_mul_f32 {v(t+7)}, {v(t+4)}, {v(ki)}
                v_fma_f32 {v(t+6)}, -{v(t+5)}, {v(ki)}, {v(t+6)}
                v_fma_f32 {v(t+7)}, -{v(t+5)}, {v(kr)}, -{v(t+7)}
                v_cvt_pk_bf16_f32 {v(o+i)}, {v(t+6)}, {v(t+7)}
                """)
            a(f"buffer_store_dwordx4 {v(o,4)}, {v(X+18+4*it)}, {s(SW,4)}, s60 offen sc1")

NSL = 4
class A2:
    def __init__(self, a, bar):
        self.a = a; self.bar = bar
        R = Regs(8)
        self.vK0 = R.alloc("vK0"); self.vK1 = R.alloc("vK1"); self.vV0 = R.alloc("vV0"); self.vV1 = R.alloc("vV1")
        self.idx = R.alloc("idx"); self.t = R.alloc("t", 8, 4)
        self.Q = [R.alloc(f"Q{b}", 6) for b in range(4)]
        self.K = [R.alloc(f"K{i}", 6) for i in range(NSL)]
        self.V = [R.alloc(f"V{i}", 8) for i in range(NSL)]
        self.S = [R.alloc(f"S{b}", 16) for b in range(4)]
        self.O = [R.alloc(f"O{b}", 16) for b in range(4)]
        self.M = R.alloc("M", 4)
        self.wo = R.alloc("wo", 8)
        self.sK, self.sK0, self.sCnt, self.sTry = 52, 53, 54, 55
    def setup(self):
        a = self.a; t = self.t
        a(f"""
        s_and_b32 s56, {s(S_W)}, 1
        s_lshr_b32 s57, {s(S_W)}, 1
        s_mul_i32 {s(self.sK0)}, s57, {32*KVREC}
        s_mul_i32 s58, {s(S_I0)}, 1280
        s_mul_i32 s59, {s(S_I0)}, 320
        s_mul_i32 s63, {s(S_I0)}, 20
        s_lshr_b32 s60, s63, 6
        s_lshl_b32 s60, s60, 7
        s_add_u32 s60, s60, {WS_KV + 81920}
        v_and_b32 {v(t)}, 31, {v(VL)}
        v_lshrrev_b32 {v(t+1)}, 5, {v(VL)}
        v_and_b32 {v(t+2)}, 3, {v(VL)}
        v_bfe_u32 {v(t+3)}, {v(VL)}, 2, 1
        v_lshl_or_b32 {v(t+2)}, {v(t+3)}, 4, {v(t+2)}
        v_bfe_u32 {v(t+3)}, {v(VL)}, 3, 2
        v_lshl_or_b32 {v(t+2)}, {v(t+3)}, 2, {v(t+2)}
        s_add_u32 s61, s58, {WS_KV}
        v_lshl_add_u32 {v(t+2)}, {v(t+2)}, 3, s61
        v_lshl_add_u32 {v(self.vK0)}, {v(t+1)}, 8, {v(t+2)}
        v_add_u32 {v(t+2)}, 1024, {v(t+2)}
        v_mov_b32 {v(t+3)}, s60
        v_cmp_gt_u32 vcc, 32, {v(VL)}
        v_mul_u32_u24 {v(t+4)}, 10240, {v(t+1)}
        s_add_u32 s61, s59, {WS_KV + 40960}
        v_cndmask_b32 {v(self.vK1)}, {v(t+3)}, {v(t+2)}, vcc
        v_lshl_add_u32 {v(t+4)}, {v(t)}, 4, {v(t+4)}
        v_add_u32 {v(t+4)}, s61, {v(t+4)}
        v_cmp_gt_u32 vcc, 20, {v(t)}
        v_add_u32 {v(t+5)}, 20480, {v(t+4)}
        v_mov_b32 {v(self.idx)}, 0xdddddddd
        v_cndmask_b32 {v(self.vV0)}, {v(t+3)}, {v(t+4)}, vcc
        v_cndmask_b32 {v(self.vV1)}, {v(t+3)}, {v(t+5)}, vcc
        s_mov_b32 {s(self.sTry)}, 0
        """)
        for b in range(4):
            a(f"v_mov_b32 {v(self.Q[b]+4)}, 0\nv_mov_b32 {v(self.Q[b]+5)}, 0")
    def poll_qkv(self):
        a = self.a; t = self.t
        sk = a.label("nopoll"); q = a.label("pq"); go = a.label("pgo")
        a(f"""
        s_lshr_b32 s60, s63, 7
        s_add_u32 s61, s63, 19
        s_lshr_b32 s61, s61, 7
        s_sub_u32 s61, s61, s60
        v_bfe_u32 {v(t)}, {v(VL)}, 4, 1
        v_mul_u32_u24 {v(t)}, s61, {v(t)}
        v_add_u32 {v(t)}, s60, {v(t)}
        s_cmp_eq_u32 s56, s57
        s_cbranch_scc1 {sk}
        s_cmp_eq_u32 s57, 1
        s_cbranch_scc1 {q}
        v_lshrrev_b32 {v(t+1)}, 5, {v(VL)}
        v_mad_u32_u24 {v(t)}, {v(t+1)}, 5, {v(t)}
        v_add_u32 {v(t)}, 5, {v(t)}
        v_and_b32 {v(t+1)}, 15, {v(VL)}
        s_branch {go}
        {q}:
        v_and_b32 {v(t+1)}, 1, {v(VL)}
        s_lshl_b32 s60, {s(S_I1)}, 1
        v_add_u32 {v(t+1)}, s60, {v(t+1)}
        {go}:
        v_lshl_add_u32 {v(t)}, {v(t)}, 4, {v(t+1)}
        v_mul_u32_u24 {v(t)}, {FSTR}, {v(t)}
        v_add_u32 {v(t)}, {FL_QKV}, {v(t)}
        """)
        poll(a, t, t + 1, sleep=opt("psleep"))
        a(f"{sk}:\ns_waitcnt vmcnt(0)")
    def load_q(self):
        a = self.a; t = self.t
        a(f"""
        s_lshl_b32 s61, {s(S_I1)}, 1
        s_add_u32 s61, s61, s56
        s_mul_i32 s61, s61, {4*QREC}
        s_add_u32 s61, s61, s58
        v_lshlrev_b32 {v(t+6)}, 3, {v(VL)}
        """)
        for b in range(4):
            a(f"buffer_load_dwordx2 {v(self.Q[b],2)}, {v(t+6)}, {s(SW,4)}, s61 offen sc1")
            a(f"buffer_load_dwordx2 {v(self.Q[b]+2,2)}, {v(t+6)}, {s(SW,4)}, s61 offen offset:512 sc1")
            a("s_mov_b32 exec_hi, 0")
            a(f"buffer_load_dwordx2 {v(self.Q[b]+4,2)}, {v(t+6)}, {s(SW,4)}, s61 offen offset:1024 sc1")
            a("s_mov_b32 exec_hi, -1")
            if b < 3: a(f"s_add_u32 s61, s61, {QREC}")
    def kv_loads(self, slot, withv=True):
        K = self.K[slot]; V = self.V[slot]; W = s(SW, 4); so = s(self.sK)
        L = [f"buffer_load_dwordx2 {v(K,2)}, {v(self.vK0)}, {W}, {so} offen sc1",
             f"buffer_load_dwordx2 {v(K+2,2)}, {v(self.vK0)}, {W}, {so} offen offset:512 sc1",
             f"buffer_load_dwordx2 {v(K+4,2)}, {v(self.vK1)}, {W}, {so} offen sc1"]
        if withv:
            L += [f"buffer_load_dwordx4 {v(V,4)}, {v(self.vV0)}, {W}, {so} offen sc1",
                  f"buffer_load_dwordx4 {v(V+4,4)}, {v(self.vV1)}, {W}, {so} offen sc1"]
        L.append(f"s_add_u32 {so}, {so}, {KVREC}")
        return L
    def M8(self, b, slot):
        return f"v_mfma_f32_32x32x8_bf16 {v(self.S[b],16)}, {v(self.K[slot]+4,2)}, {v(self.Q[b]+4,2)}, 0"
    def M16(self, b, slot):
        return f"v_mfma_f32_32x32x16_bf16 {v(self.S[b],16)}, {v(self.K[slot],4)}, {v(self.Q[b],4)}, {v(self.S[b],16)}"
    def SM(self, b, slot, g):
        return f"v_smfmac_f32_32x32x32_bf16 {v(self.O[b],16)}, {v(self.V[slot]+4*g,4)}, {v(self.S[b]+8*g,8)}, {v(self.idx)}"
    def zero(self):
        a = self.a
        for b in range(4):
            for r in range(16): a(f"v_mov_b32 {v(self.O[b]+r)}, 0")
        for r in range(16): a(f"v_mov_b32 {v(self.S[3]+r)}, 0")
        for r in range(8): a(f"v_mov_b32 {v(self.V[NSL-1]+r)}, 0")
    def body(self, last):
        a = self.a; gate = opt("gate", 8)
        for st in range(NSL):
            for b in range(4):
                e = [f"v_exp_f32 {v(self.S[b]+r)}, {v(self.S[b]+r)}" for r in range(16)]
                nb = (b + 1) % 4; nsl = st if b < 3 else (st + 1) % NSL
                pb = (b - 1) % 4; psl = st if b > 0 else (st - 1) % NSL
                extra = []
                if b == 1 and not (last and st > 0): extra = self.kv_loads((st - 1) % NSL)
                if last and 4 * st + b == gate:
                    extra = extra + [f"ds_write_b32 {v(VBW)}, {v(self.idx)} offset:32"]
                fin = last and st == NSL - 1 and b == 3
                if b == 3 and not fin:
                    a(f"s_waitcnt vmcnt({5*(NSL-2) if not last else 5*max(0, NSL-2-st)})")
                seq = ([] if fin else [self.M8(nb, nsl)]) + e[0:4] + ([] if fin else [self.M16(nb, nsl)]) + e[4:7] + [self.SM(pb, psl, 0)] + e[7:10] + [self.SM(pb, psl, 1)] + extra + e[10:16]
                for x in seq: a(x)
    def main(self):
        a = self.a
        a(f"s_mov_b32 {s(self.sK)}, {s(self.sK0)}")
        for sl in range(NSL - 1):
            for x in self.kv_loads(sl): a(x)
        a(f"s_mov_b32 {s(self.sCnt)}, {32//NSL - 1}")
        a(f"s_waitcnt vmcnt({5*(NSL-2)})")
        stamp(a, 5)
        a(self.M8(0, 0)); a(self.M16(0, 0))
        a("s_nop 10")
        loop = a.label("attn")
        a(f".p2align 3\n{loop}:")
        self.body(False)
        a(f"s_sub_u32 {s(self.sCnt)}, {s(self.sCnt)}, 1\ns_cmp_lg_u32 {s(self.sCnt)}, 0\ns_cbranch_scc1 {loop}")
        self.body(True)
        if opt("gate", 8) >= 16: a(f"ds_write_b32 {v(VBW)}, {v(self.idx)} offset:32")
        a("s_nop 1")
        a(self.SM(3, NSL - 1, 0)); a(self.SM(3, NSL - 1, 1))
    def maxpass(self):
        a = self.a; t = self.t
        a(f"s_mov_b32 {s(self.sK)}, {s(self.sK0)}")
        for b in range(4): a(f"v_mov_b32 {v(self.M+b)}, 0xff800000")
        a(f"s_mov_b32 {s(self.sCnt)}, 32")
        loop = a.label("maxp")
        a(f"{loop}:")
        for x in self.kv_loads(0, withv=False): a(x)
        a("s_waitcnt vmcnt(0)")
        for b in range(4): a(self.M8(b, 0)); a(self.M16(b, 0))
        a("s_nop 11")
        for b in range(4):
            for r in range(0, 16, 2):
                a(f"v_max3_f32 {v(self.M+b)}, {v(self.S[b]+r)}, {v(self.S[b]+r+1)}, {v(self.M+b)}")
        a(f"s_sub_u32 {s(self.sCnt)}, {s(self.sCnt)}, 1\ns_cmp_lg_u32 {s(self.sCnt)}, 0\ns_cbranch_scc1 {loop}")
        a(f"""
        s_lshl_b32 s61, {s(S_W)}, 10
        s_add_u32 s61, s61, {L_ARED}
        v_lshl_add_u32 {v(t)}, {v(VL)}, 4, s61
        ds_write_b128 {v(t)}, {v(self.M,4)}
        s_waitcnt lgkmcnt(0)
        """)
        self.bar(count=False)
        S = self.S[0]
        a(f"""
        v_and_b32 {v(t)}, 31, {v(VL)}
        s_lshl_b32 s61, s56, 10
        s_add_u32 s61, s61, {L_ARED}
        v_lshl_add_u32 {v(t)}, {v(t)}, 4, s61
        ds_read_b128 {v(S,4)}, {v(t)}
        ds_read_b128 {v(S+4,4)}, {v(t)} offset:512
        ds_read_b128 {v(S+8,4)}, {v(t)} offset:2048
        ds_read_b128 {v(S+12,4)}, {v(t)} offset:2560
        s_waitcnt lgkmcnt(0)
        """)
        self.bar(count=False)
        a("s_mov_b32 exec_lo, 0")
        for b in range(4):
            m = self.M + b
            a(f"""
            v_max3_f32 {v(m)}, {v(S+b)}, {v(S+4+b)}, {v(S+8+b)}
            v_max_f32 {v(m)}, {v(m)}, {v(S+12+b)}
            v_sub_f32 {v(m)}, 0, {v(m)}
            v_and_b32 {v(t)}, 0xffff0000, {v(m)}
            v_sub_f32 {v(t+1)}, {v(m)}, {v(t)}
            v_and_b32 {v(t+2)}, 0xffff0000, {v(t+1)}
            v_sub_f32 {v(t+1)}, {v(t+1)}, {v(t+2)}
            v_lshrrev_b32 {v(t)}, 16, {v(t)}
            v_or_b32 {v(self.Q[b]+4)}, {v(t)}, {v(t+2)}
            v_lshrrev_b32 {v(self.Q[b]+5)}, 16, {v(t+1)}
            """)
        a("s_mov_b32 exec_lo, -1")
    def epi_setup(self):
        a = self.a; t = self.t; w = self.wo; WB = 6656
        a(f"""
        s_mul_i32 s61, {s(S_W)}, {WB}
        s_add_u32 s61, s61, {L_ARED}
        s_xor_b32 s62, {s(S_W)}, 2
        s_mul_i32 s62, s62, {WB}
        s_add_u32 s62, s62, {L_ARED}
        v_lshl_add_u32 {v(w)}, {v(VL)}, 4, s61
        v_lshl_add_u32 {v(w+1)}, {v(VL)}, 2, s61
        v_lshl_add_u32 {v(w+2)}, {v(VL)}, 4, s62
        v_lshl_add_u32 {v(w+3)}, {v(VL)}, 2, s62
        s_lshl_b32 s64, {s(S_I1)}, 1
        s_add_u32 s64, s64, s56
        s_lshl_b32 s64, s64, 1
        s_add_u32 s64, s64, s57
        s_mul_i32 s64, s64, {4*OREC}
        s_add_u32 s64, s64, {WS_O}
        s_add_u32 s65, s64, {2*OREC}
        v_bfe_u32 {v(t)}, {v(VL)}, 4, 1
        v_mul_u32_u24 {v(t)}, {OREC}, {v(t)}
        v_and_b32 {v(t+1)}, 15, {v(VL)}
        v_lshrrev_b32 {v(t+2)}, 5, {v(VL)}
        v_lshl_add_u32 {v(t+2)}, {v(t+2)}, 8, {v(t)}
        v_lshl_add_u32 {v(t+2)}, {v(t+1)}, 4, {v(t+2)}
        s_lshl_b32 s61, {s(S_I0)}, 9
        v_add_u32 {v(w+4)}, s61, {v(t+2)}
        v_lshl_add_u32 {v(t+3)}, {v(t+1)}, 3, {v(t)}
        s_lshl_b32 s61, {s(S_I0)}, 7
        s_add_u32 s61, s61, 16384
        v_add_u32 {v(w+5)}, s61, {v(t+3)}
        """)
    def reduce_store(self, lab_retry):
        a = self.a; t = self.t; w = self.wo
        l1 = a.label("red1"); l2 = a.label("red2")
        a(f"s_cmp_eq_u32 s57, 0\ns_cbranch_scc0 {l1}")
        for kh in range(2):
            if kh: a(f"{l1}:")
            for i in range(2):
                O = self.O[2 * (1 - kh) + i]
                for g in range(3):
                    a(f"ds_write_b128 {v(w)}, {v(O+4*g,4)} offset:{3328*i + 1024*g}")
                a(f"ds_write_b32 {v(w+1)}, {v(O+12)} offset:{3328*i + 3072}")
            self.bar(count=(kh == 0))
            for i in range(2):
                a(f"ds_read_b32 {v(self.S[i]+12)}, {v(w+3)} offset:{3328*i + 3072}")
                for g in range(3):
                    a(f"ds_read_b128 {v(self.S[i]+4*g,4)}, {v(w+2)} offset:{3328*i + 1024*g}")
            for i in range(2):
                O = self.O[2 * kh + i]
                a(f"s_waitcnt lgkmcnt({4*(1-i)})")
                a(f"v_add_f32 {v(self.S[i]+12)}, {v(self.S[i]+12)}, {v(O+12)}")
                a(f"v_rcp_f32 {v(self.S[i]+13)}, {v(self.S[i]+12)}")
                for r in range(12): a(f"v_add_f32 {v(self.S[i]+r)}, {v(self.S[i]+r)}, {v(O+r)}")
            if not kh: a(f"s_branch {l2}")
        a(f"{l2}:")
        for i in range(2):
            P = self.S[2] + 8 * i
            for r in range(12): a(f"v_mul_f32 {v(self.S[i]+r)}, {v(self.S[i]+r)}, {v(self.S[i]+13)}")
            for r in range(6): a(f"v_cvt_pk_bf16_f32 {v(P+r)}, {v(self.S[i]+2*r)}, {v(self.S[i]+2*r+1)}")
            a(f"buffer_store_dwordx4 {v(P,4)}, {v(w+4)}, {s(SW,4)}, {s(64+i)} offen sc1")
            a("s_mov_b32 exec_hi, 0")
            a(f"buffer_store_dwordx2 {v(P+4,2)}, {v(w+5)}, {s(SW,4)}, {s(64+i)} offen sc1")
            a("s_mov_b32 exec_hi, -1")
        a(f"""
        v_min_f32 {v(t+4)}, {v(self.S[0]+12)}, {v(self.S[1]+12)}
        v_max_f32 {v(t+5)}, {v(self.S[0]+12)}, {v(self.S[1]+12)}
        v_add_f32 {v(t+6)}, {v(self.S[0]+12)}, {v(self.S[1]+12)}
        """)
        for i in range(2):
            for r in range(12):
                a(f"v_fma_f32 {v(t+6)}, {v(self.S[i]+r)}, 0, {v(t+6)}")
        a(f"""
        v_cmp_nle_f32 vcc, 0x2f800000, {v(t+4)}
        s_mov_b64 s[62:63], vcc
        v_cmp_nge_f32 vcc, 0x5f800000, {v(t+5)}
        s_or_b64 s[62:63], s[62:63], vcc
        v_cmp_u_f32 vcc, {v(t+6)}, {v(t+6)}
        s_or_b64 s[62:63], s[62:63], vcc
        s_cselect_b32 s61, 1, 0
        v_mov_b32 {v(t+4)}, s61
        ds_write_b32 {v(VBW)}, {v(t+4)} offset:48
        s_waitcnt vmcnt(0)
        """)
        self.bar()
        a(f"""
        ds_read_b32 {v(t+4)}, {v(VBR)} offset:48
        s_waitcnt lgkmcnt(0)
        v_cmp_lt_u32 vcc, {s(self.sTry)}, {v(t+4)}
        s_cbranch_vccnz {lab_retry}
        """)

def wo_addr(a, vo, t, S):
    a.srd(S, P_WO, 640 * 1280)
    for i in range(5):
        a(f"""
        v_add_u32 {v(t)}, {64*i}, {v(VL)}
        v_mul_u32_u24 {v(t+1)}, 6554, {v(t)}
        v_lshrrev_b32 {v(t+1)}, 16, {v(t+1)}
        v_mul_u32_u24 {v(t+1)}, {1280-160}, {v(t+1)}
        v_lshl_add_u32 {v(vo+i)}, {v(VL)}, 4, {v(t+1)}
        """)
    a(f"v_add_u32 {v(vo+4)}, 4096, {v(vo+4)}")
def wo_load(a, vo, S, s_ct, groups):
    a(f"""
    s_mul_i32 s60, {s(s_ct)}, 160
    s_mul_i32 s61, {s(S_W)}, {32*1280}
    s_add_u32 s60, s60, s61
    s_add_u32 s60, s60, {groups[0]*128*1280}
    s_mul_i32 s61, {s(S_W)}, 5120
    """)
    for g in groups:
        a(f"s_add_u32 m0, s61, {L_WO + g*20480}\ns_nop 0")
        for i in range(4):
            a(f"buffer_load_dwordx4 {v(vo+i)}, {s(S,4)}, s60 offen offset:{1024*i} lds")
        a(f"s_add_u32 m0, s61, {L_WO + g*20480 + 4096}\ns_nop 0")
        a(f"buffer_load_dwordx4 {v(vo+4)}, {s(S,4)}, s60 offen lds")
        if g != groups[-1]: a(f"s_add_u32 s60, s60, {128*1280}")

class A3:
    def __init__(self, a):
        self.a = a
        R = Regs(16)
        self.aw = R.alloc("aw", 4); self.t = R.alloc("t", 4)
        self.Of = R.alloc("Of", 80, 4)
        self.W = [R.alloc(f"W{i}", 20, 4) for i in range(3)]
        self.acc = R.alloc("acc", 20, 4)
        self.SO = 52
    def setup(self):
        a = self.a; t = self.t; aw = self.aw
        a.srd(self.SO, P_OUT, 2048 * 5120)
        a(f"""
        v_bfe_u32 {v(t)}, {v(VL)}, 2, 2
        v_bfe_u32 {v(t+1)}, {v(VL)}, 4, 1
        v_lshl_add_u32 {v(t+1)}, {v(t+1)}, 2, {v(t)}
        v_lshrrev_b32 {v(t+2)}, 5, {v(VL)}
        v_mad_u32_u24 {v(t+1)}, {v(t+2)}, 20, {v(t+1)}
        v_mul_u32_u24 {v(t+1)}, 160, {v(t+1)}
        v_and_b32 {v(t+3)}, 3, {v(VL)}
        v_lshlrev_b32 {v(t+3)}, 3, {v(t+3)}
        v_add_u32 {v(t+3)}, {L_WO}, {v(t+3)}
        v_add_u32 {v(aw)}, {v(t+1)}, {v(t+3)}
        v_add_u32 {v(aw+1)}, 51200, {v(aw)}
        v_lshrrev_b32 {v(t+2)}, 4, {v(VL)}
        v_mad_u32_u24 {v(t+1)}, {v(t+2)}, 20, {v(t)}
        v_add_u32 {v(t+1)}, 16, {v(t+1)}
        v_mul_u32_u24 {v(t+1)}, 160, {v(t+1)}
        v_add_u32 {v(aw+2)}, {v(t+1)}, {v(t+3)}
        v_add_u32 {v(aw+3)}, 51200, {v(aw+2)}
        s_lshl_b32 s56, {s(S_I0)}, 2
        s_add_u32 s56, s56, {s(S_W)}
        s_mul_i32 s57, s56, {OREC}
        s_add_u32 s57, s57, {WS_O}
        s_mul_i32 s58, s56, {16*5120}
        s_mul_i32 s59, {s(S_I1)}, 320
        s_add_u32 s58, s58, s59
        v_lshlrev_b32 {v(t)}, 4, {v(VL)}
        v_lshlrev_b32 {v(t+1)}, 3, {v(VL)}
        v_and_b32 {v(t+3)}, 15, {v(VL)}
        v_mul_u32_u24 {v(t+3)}, 5120, {v(t+3)}
        v_lshl_add_u32 {v(t+2)}, {v(t+2)}, 4, {v(t+3)}
        """)
    def poll_o(self):
        a = self.a; sk = a.label("nopo")
        a(f"""
        s_cmp_lg_u32 {s(S_W)}, 1
        s_cbranch_scc1 {sk}
        s_lshr_b32 s60, {s(S_I0)}, 2
        s_mul_i32 s60, s60, {32*FSTR}
        s_add_u32 s60, s60, {FL_O}
        v_and_b32 v6, 31, {v(VL)}
        v_mul_u32_u24 v6, {FSTR}, v6
        v_add_u32 v6, s60, v6
        """)
        poll(a, 6, 7)
        a(f"{sk}:\ns_waitcnt vmcnt(0)")
    def load_o(self):
        a = self.a; t = self.t
        for st in range(16):
            if st and st % 4 == 0: a("s_add_u32 s57, s57, 4096")
            a(f"buffer_load_dwordx4 {v(self.Of+4*st,4)}, {v(t)}, {s(SW,4)}, s57 offen offset:{1024*(st%4)} sc1")
        a("s_add_u32 s57, s57, 4096")
        for st in range(4):
            for j in range(2):
                a(f"buffer_load_dwordx2 {v(self.Of+64+4*st+2*j,2)}, {v(t+1)}, {s(SW,4)}, s57 offen offset:{1024*st+512*j} sc1")
    def wreads(self, st):
        W = self.W[st % 3]; out = []
        for i in range(5):
            for j in range(2):
                if st < 16: off = st * 6400 + j * 1280 + i * 32; r = self.aw
                else: off = (st - 16) * 25600 + j * 12800 + i * 32; r = self.aw + 2
                if off >= 51200: off -= 51200; r += 1
                out.append(f"ds_read_b64_tr_b16 {v(W+4*i+2*j,2)}, {v(r)} offset:{off}")
        return out
    def pre(self):
        for st in range(2):
            for x in self.wreads(st): self.a(x)
    def compute(self):
        a = self.a
        for st in range(20):
            nv = (24 - (st + 1)) if st < 16 else (24 - (16 + 2 * (st - 15)))
            a(f"s_waitcnt vmcnt({nv}) lgkmcnt({10 if st < 19 else 0})")
            rd = self.wreads(st + 2) if st < 18 else []
            W = self.W[st % 3]
            for i in range(5):
                d = self.acc + 4 * i
                a(f"v_mfma_f32_16x16x32_bf16 {v(d,4)}, {v(W+4*i,4)}, {v(self.Of+4*st,4)}, {'0' if st == 0 else v(d,4)}")
                for x in rd[2*i:2*i+2]: a(x)
        a("s_nop 7")
        for i in range(5):
            a(f"buffer_store_dwordx4 {v(self.acc+4*i,4)}, {v(self.t+2)}, {s(self.SO,4)}, s58 offen offset:{64*i}")
```

```python
from fcommon import *
from fa import S_TC, S_CG, S_I0, S_I1, wo_addr, wo_load

class B1:
    def __init__(self, a, bar):
        self.a = a; self.bar = bar
        R = Regs(8)
        self.t = R.alloc("t", 16, 4)
        self.vb = R.alloc("vb", 7)
        self.ar = [R.alloc(f"ar{i}", 4) for i in range(2)]
        self.L1 = R.alloc("L1", 10); self.LP = R.alloc("LP", 10); self.LS = R.alloc("LS", 2)
        self.acc = R.alloc("acc", 40, 4)
        self.F = [R.alloc(f"F{i}", 44, 4) for i in range(2)]
        self.X = R.alloc("X", 48, 4)
        self.vx = self.F[0]; self.vw = self.F[0] + 4
        self.SX, self.SB = 48, 52
        self.SX2, self.SB2, self.ST = 56, 92 if not STAMPS else 64, 88 if not STAMPS else 64
    def ld_valu(self):
        a = self.a; t = self.t; vx = self.vx; vw = self.vw
        a(f"""
        v_lshrrev_b32 {v(t)}, 3, {v(VL)}
        v_mul_u32_u24 {v(t)}, 1280, {v(t)}
        v_lshrrev_b32 {v(t+1)}, 4, {v(VL)}
        v_and_b32 {v(t+2)}, 7, {v(VL)}
        v_xor_b32 {v(t+2)}, {v(t+2)}, {v(t+1)}
        v_lshl_add_u32 {v(t+3)}, {v(t+2)}, 4, {v(t)}
        s_lshl_b32 s60, {s(S_I0)}, 2
        s_add_u32 s60, s60, {s(S_W)}
        s_mul_i32 s60, s60, {32*1280}
        v_add_u32 {v(vx)}, s60, {v(t+3)}
        v_xor_b32 {v(vx+1)}, 64, {v(vx)}
        v_add_u32 {v(vx+2)}, {2*(8*1280-1024)}, {v(vx)}
        v_add_u32 {v(vx+3)}, {3*(8*1280-1024)}, {v(vx+1)}
        v_add_u32 {v(vx+1)}, {1*(8*1280-1024)}, {v(vx+1)}
        v_mul_u32_u24 {v(t)}, 3840, {v(t+1)}
        v_lshlrev_b32 {v(t+1)}, 1, {v(t+1)}
        v_and_b32 {v(t+2)}, 15, {v(VL)}
        v_xor_b32 {v(t+2)}, {v(t+2)}, {v(t+1)}
        v_lshl_add_u32 {v(t+3)}, {v(t+2)}, 4, {v(t)}
        s_mul_i32 s60, {s(S_W)}, {16*3840}
        s_lshl_b32 s61, {s(S_I1)}, 8
        s_add_u32 s60, s60, s61
        v_add_u32 {v(vw)}, s60, {v(t+3)}
        v_xor_b32 {v(vw+2)}, 0x80, {v(vw)}
        v_add_u32 {v(vw+1)}, {1*(4*3840-1024)}, {v(vw)}
        v_add_u32 {v(vw+3)}, {3*(4*3840-1024)}, {v(vw+2)}
        v_add_u32 {v(vw+2)}, {2*(4*3840-1024)}, {v(vw+2)}
        s_and_b32 s62, {s(S_I0)}, 3
        s_mul_i32 s62, s62, 3
        s_add_u32 s62, s62, {s(S_I1)}
        s_mul_i32 s60, s62, 205
        s_lshr_b32 s60, s60, 11
        s_mul_i32 s60, s60, 10
        s_sub_u32 s62, s62, s60
        s_lshl_b32 s63, {s(S_W)}, 12
        """)
        if opt("norot"): a("s_mov_b32 s62, 0")
    def ld_srd(self, s_idle):
        a = self.a
        a(f"""
        s_mov_b32 {s(self.SX)}, {s(P_AX)}
        s_mov_b32 {s(self.SX+1)}, {s(P_AX+1)}
        s_mov_b32 {s(self.SX+3)}, 0x00020000
        s_mov_b32 {s(self.SB)}, {s(P_WQKV)}
        s_mov_b32 {s(self.SB+1)}, {s(P_WQKV+1)}
        s_mov_b32 {s(self.SB+3)}, 0x00020000
        s_cmp_eq_u32 {s(s_idle)}, 0
        s_cselect_b32 {s(self.SX+2)}, {2048*1280}, 0
        s_cselect_b32 {s(self.SB+2)}, {640*3840}, 0
        """)
    def ld_issue(self, st):
        a = self.a; base = L_RING + (st % 3) * 32768
        a(f"s_add_u32 m0, s63, {base}\ns_lshl_b32 s60, s62, 7")
        for i in range(4):
            a(f"buffer_load_dwordx4 {v(self.vx+i)}, {s(self.SX,4)}, s60 offen offset:{1024*i} lds")
        a(f"s_add_u32 m0, s63, {base+16384}\ns_mul_i32 s60, s62, {64*3840}")
        for i in range(4):
            a(f"buffer_load_dwordx4 {v(self.vw+i)}, {s(self.SB,4)}, s60 offen offset:{1024*i} lds")
        a("s_add_u32 s62, s62, 1\ns_cmp_eq_u32 s62, 10\ns_cselect_b32 s62, 0, s62")
    def cexp(self, dst, zr, zi, mul, t):
        a = self.a
        if mul is None:
            a(f"v_fract_f32 {v(t+1)}, {v(zi)}\nv_exp_f32 {v(t)}, {v(zr)}")
        else:
            a(f"v_mul_f32 {v(t)}, {mul}, {v(zr)}\nv_mul_f32 {v(t+1)}, {mul}, {v(zi)}\nv_fract_f32 {v(t+1)}, {v(t+1)}\nv_exp_f32 {v(t)}, {v(t)}")
        a(f"""
        v_cos_f32 {v(dst)}, {v(t+1)}
        v_sin_f32 {v(dst+1)}, {v(t+1)}
        s_nop 0
        v_mul_f32 {v(dst)}, {v(dst)}, {v(t)}
        v_mul_f32 {v(dst+1)}, {v(dst+1)}, {v(t)}
        """)
    def params_load(self):
        a = self.a; t = self.t; X = self.X
        a(f"""
        s_mul_i32 s60, {s(S_CG)}, 160
        v_and_b32 {v(t)}, 15, {v(VL)}
        v_lshl_add_u32 {v(t+1)}, {v(t)}, 3, s60
        v_lshl_add_u32 {v(t+2)}, {v(t)}, 1, s60
        s_and_b32 s61, {s(S_W)}, 1
        s_mul_i32 s61, s61, 80
        s_add_u32 s61, s61, s60
        v_min_u32 {v(t+3)}, 39, {v(VL)}
        v_lshl_add_u32 {v(t+3)}, {v(t+3)}, 1, s61
        """)
        for j, P in enumerate((P_LRE, P_LIM, P_LDT)):
            a.srd(self.SX2, P, 1280)
            a(f"buffer_load_dwordx2 {v(X+4*j,2)}, {v(t+1)}, {s(self.SX2,4)}, 0 offen")
            a(f"buffer_load_ushort {v(X+4*j+2)}, {v(t+2)}, {s(self.SX2,4)}, 0 offen offset:128")
            a(f"buffer_load_ushort {v(X+4*j+3)}, {v(t+3)}, {s(self.SX2,4)}, 0 offen")
    def params_calc(self, g):
        a = self.a; t = self.t; X = self.X
        if g == 0:
            a(f"""
            v_lshrrev_b32 {v(t+4)}, 4, {v(VL)}
            s_lshl_b32 s60, {s(S_W)}, 4
            v_lshl_add_u32 {v(t+4)}, {v(t+4)}, 2, s60
            v_cvt_f32_u32 {v(t+4)}, {v(t+4)}
            """)
        lr, li, ld, zr, zi = t + 12, t + 13, t + 14, t + 6, t + 7
        def ext(d, j):
            if g < 4:
                r = X + 4 * j + (g >> 1)
                return f"v_and_b32 {v(d)}, 0xffff0000, {v(r)}" if g & 1 else f"v_lshlrev_b32 {v(d)}, 16, {v(r)}"
            return f"v_lshlrev_b32 {v(d)}, 16, {v(X+4*j+g-2)}"
        a(f"""
        {ext(ld, 2)}
        v_mul_f32 {v(ld)}, {LOG2E}, {v(ld)}
        v_exp_f32 {v(ld)}, {v(ld)}
        {ext(lr, 0)}
        {ext(li, 1)}
        v_cvt_pk_bf16_f32 {v(ld)}, {v(ld)}, {v(ld)}
        v_and_b32 {v(ld)}, 0xffff0000, {v(ld)}
        v_mul_f32 {v(zr)}, {v(ld)}, {v(lr)}
        v_mul_f32 {v(zi)}, {v(ld)}, {v(li)}
        v_mul_f32 {v(zr)}, {LOG2E}, {v(zr)}
        v_mul_f32 {v(zi)}, {INV2PI}, {v(zi)}
        """)
        if g < 5:
            self.cexp(self.L1 + 2 * g, zr, zi, None, t)
            self.cexp(self.LP + 2 * g, zr, zi, v(t + 4), t)
        else:
            a(f"s_cmp_lt_u32 {s(S_W)}, 2\ns_cselect_b32 s60, 4.0, 0x42800000")
            self.cexp(self.LS, zr, zi, "s60", t)
            self.cexp(t + 8, zr, zi, None, t)
            a(f"""
            v_add_f32 {v(t+8)}, -1.0, {v(t+8)}
            v_mul_f32 {v(t)}, {v(lr)}, {v(lr)}
            v_fmac_f32 {v(t)}, {v(li)}, {v(li)}
            v_rcp_f32 {v(t)}, {v(t)}
            v_mul_f32 {v(t+10)}, {v(t+8)}, {v(lr)}
            v_fmac_f32 {v(t+10)}, {v(t+9)}, {v(li)}
            v_mul_f32 {v(t+11)}, {v(t+9)}, {v(lr)}
            v_fma_f32 {v(t+11)}, -{v(t+8)}, {v(li)}, {v(t+11)}
            v_add_f32 {v(t)}, {v(t)}, {v(t)}
            v_mul_f32 {v(t+10)}, {v(t+10)}, {v(t)}
            v_mul_f32 {v(t+11)}, {v(t+11)}, {v(t)}
            s_and_b32 s61, {s(S_W)}, 1
            s_mul_i32 s61, s61, 320
            v_min_u32 {v(t+3)}, 39, {v(VL)}
            v_lshl_add_u32 {v(t+3)}, {v(t+3)}, 3, s61
            ds_write_b64 {v(t+3)}, {v(t+10,2)} offset:{L_COEF}
            """)
    def gemm_setup(self):
        a = self.a; t = self.t; vb = self.vb; ar = self.ar[0]
        a(f"""
        s_and_b32 s60, {s(S_W)}, 1
        s_lshr_b32 s61, {s(S_W)}, 1
        v_lshrrev_b32 {v(t)}, 3, {v(VL)}
        v_lshrrev_b32 {v(t+1)}, 4, {v(VL)}
        v_and_b32 {v(t+2)}, 7, {v(VL)}
        v_xor_b32 {v(t+2)}, {v(t+2)}, {v(t+1)}
        v_lshlrev_b32 {v(t+2)}, 4, {v(t+2)}
        s_lshl_b32 s6, s61, 6
        v_xor_b32 {v(t+3)}, s6, {v(t+2)}
        s_lshl_b32 s6, s61, 3
        v_add_u32 {v(t+8)}, s6, {v(t)}
        s_mul_i32 s6, {s(S_CG)}, {80*1280}
        v_add_u32 {v(t+3)}, s6, {v(t+3)}
        v_mul_u32_u24 {v(t+5)}, {4*1280}, {v(t+8)}
        v_add_u32 {v(vb)}, {v(t+5)}, {v(t+3)}
        v_add_u32 {v(vb+1)}, {1*(1280-1024)}, {v(vb)}
        v_add_u32 {v(vb+2)}, {2*(1280-1024)}, {v(vb)}
        v_add_u32 {v(vb+3)}, {3*(1280-1024)}, {v(vb)}
        v_mul_u32_u24 {v(t+5)}, 1280, {v(t+8)}
        v_add_u32 {v(t+5)}, {64*1280}, {v(t+5)}
        v_add_u32 {v(vb+4)}, {v(t+5)}, {v(t+3)}
        s_lshl_b32 s6, {s(S_TC)}, 2
        s_add_u32 s6, s6, {s(S_W)}
        s_mul_i32 s6, s6, {16*1280}
        v_mul_u32_u24 {v(t+5)}, 1280, {v(t)}
        v_add3_u32 {v(vb+5)}, {v(t+5)}, {v(t+2)}, s6
        v_xor_b32 {v(vb+6)}, 64, {v(vb+5)}
        v_add_u32 {v(vb+6)}, {8*1280-1024}, {v(vb+6)}
        s_lshl_b32 s41, s60, 1
        s_add_u32 s41, s41, s61
        s_mul_i32 s41, s41, 7168
        v_and_b32 {v(t)}, 15, {v(VL)}
        v_lshrrev_b32 {v(t+2)}, 1, {v(t)}
        v_xor_b32 {v(t+2)}, {v(t+2)}, {v(t+1)}
        v_lshlrev_b32 {v(t+2)}, 4, {v(t+2)}
        v_lshl_add_u32 {v(t+3)}, {v(t)}, 7, {v(t+2)}
        s_add_u32 s6, s41, {L_RING + 5120}
        v_add_u32 {v(ar)}, s6, {v(t+3)}
        v_xor_b32 {v(ar+1)}, 64, {v(ar)}
        v_lshrrev_b32 {v(t+5)}, 3, {v(t)}
        v_mul_u32_u24 {v(t+5)}, {7168-1024}, {v(t+5)}
        v_add_u32 {v(t+3)}, {v(t+3)}, {v(t+5)}
        v_add_u32 {v(ar+2)}, {L_RING}, {v(t+3)}
        v_xor_b32 {v(ar+3)}, 64, {v(ar+2)}
        s_and_b32 s40, {s(S_CG)}, 3
        s_mul_i32 s40, s40, 3
        s_and_b32 s6, {s(S_TC)}, 7
        s_add_u32 s40, s40, s6
        s_sub_u32 s6, s40, 10
        s_cmp_ge_u32 s40, 10
        s_cselect_b32 s40, s6, s40
        """)
        for j in range(4): a(f"v_add_u32 {v(self.ar[1]+j)}, 0x10000, {v(ar+j)}")
    def gemm_srd(self):
        a = self.a
        a.srd(self.SX, P_BX, 2048 * 1280)
        a(f"""
        s_bitcmp0_b32 {s(S_W)}, 0
        s_cselect_b32 {s(self.SB)}, {s(P_BRE)}, {s(P_BIM)}
        s_cselect_b32 {s(self.SB+1)}, {s(P_BRE+1)}, {s(P_BIM+1)}
        s_mov_b32 {s(self.SB+2)}, {640*1280}
        """)
    def issue(self, st):
        a = self.a; vb = self.vb; base = L_RING + ((st + 1) % 3) * 32768
        a(f"s_add_u32 m0, s41, {base}\ns_lshl_b32 s60, s40, 7")
        for g in range(4):
            a(f"buffer_load_dwordx4 {v(vb+g)}, {s(self.SB,4)}, s60 offen offset:{1024*g} lds")
        a(f"s_add_u32 m0, s41, {base+4096}\ns_add_u32 s40, s40, 1")
        a(f"buffer_load_dwordx4 {v(vb+4)}, {s(self.SB,4)}, s60 offen lds")
        a(f"s_add_u32 m0, s41, {base+5120}\ns_cmp_eq_u32 s40, 10\ns_cselect_b32 s40, 0, s40")
        a(f"buffer_load_dwordx4 {v(vb+5)}, {s(self.SX,4)}, s60 offen lds")
        a(f"buffer_load_dwordx4 {v(vb+6)}, {s(self.SX,4)}, s60 offen offset:1024 lds")
    def reads(self, step):
        st, ks = divmod(step, 2); F = self.F[step & 1]; slot = (st + 1) % 3
        off = (slot & 1) * 32768; ar = self.ar[slot // 2]
        out = [f"ds_read_b128 {v(F,4)}, {v(ar+ks)} offset:{off}"]
        for g in range(5):
            for p in range(2):
                out.append(f"ds_read_b128 {v(F+4+8*g+4*p,4)}, {v(ar+2+ks)} offset:{off + p*14336 + g*1024}")
        return out
    def mf(self, step):
        F = self.F[step & 1]; out = []
        for i in range(10):
            d = self.acc + 4 * i
            out.append(f"v_mfma_f32_16x16x32_bf16 {v(d,4)}, {v(F,4)}, {v(F+4+4*i,4)}, {'0' if step == 0 else v(d,4)}")
        return out
    def gemm(self):
        a = self.a
        for step in range(21):
            st = step // 2
            if step < 20 and step % 2 == 0:
                a(f"s_waitcnt vmcnt({7 if st < 9 else 0}) lgkmcnt(0)")
                self.bar()
                if st == 0: stamp(a, 3)
                rd = self.reads(step)
                for x in rd: a(x)
                rd = []
                if st + 2 < 10: self.issue(st + 2)
            else:
                a("s_waitcnt lgkmcnt(0)")
                rd = self.reads(step) if step < 20 else []
            mm = self.mf(step - 1) if step else []
            for i in range(10):
                for x in rd[2*i:2*i+2]: a(x)
                if i < len(mm): a(mm[i])
    def cfma2(self, dr, di, L, hr, hi, ur, ui):
        self.a(f"""
        v_fma_f32 {v(dr)}, {v(L)}, {v(hr)}, {v(ur)}
        v_fma_f32 {v(di)}, {v(L)}, {v(hi)}, {v(ui)}
        v_fma_f32 {v(dr)}, -{v(L+1)}, {v(hi)}, {v(dr)}
        v_fma_f32 {v(di)}, {v(L+1)}, {v(hr)}, {v(di)}
        """)
    def scan_setup(self):
        a = self.a; t = self.t
        a(f"""
        v_and_b32 {v(t+10)}, 15, {v(VL)}
        v_lshrrev_b32 {v(t+11)}, 4, {v(VL)}
        v_lshlrev_b32 {v(t+2)}, 5, {v(t+10)}
        v_lshlrev_b32 {v(t+3)}, 3, {v(t+10)}
        v_add_u32 {v(t+3)}, 512, {v(t+3)}
        v_mul_u32_u24 {v(t+4)}, 640, {v(t+11)}
        s_mul_i32 s60, {s(S_W)}, 2560
        v_add3_u32 {v(t)}, {v(t+2)}, {v(t+4)}, s60
        v_add3_u32 {v(t+1)}, {v(t+3)}, {v(t+4)}, s60
        s_and_b32 s60, {s(S_W)}, 1
        s_mul_i32 s61, s60, 320
        v_min_u32 {v(t+4)}, 39, {v(VL)}
        v_lshl_add_u32 {v(t+4)}, {v(t+4)}, 3, s61
        s_lshl_b32 s61, {s(S_CG)}, 1
        s_add_u32 s61, s61, s60
        s_lshl_b32 s61, s61, 9
        v_lshl_add_u32 {v(t+5)}, {v(VL)}, 3, s61
        s_mul_i32 s60, {s(S_W)}, 5440
        s_add_u32 s60, s60, {L_BRED}
        v_mul_u32_u24 {v(t+6)}, 272, {v(t+10)}
        v_lshl_add_u32 {v(t+6)}, {v(t+11)}, 6, {v(t+6)}
        v_add_u32 {v(t+6)}, s60, {v(t+6)}
        v_lshrrev_b32 {v(t+7)}, 2, {v(t+10)}
        v_mul_u32_u24 {v(t+7)}, 272, {v(t+7)}
        v_lshl_add_u32 {v(t+7)}, {v(t+11)}, 6, {v(t+7)}
        v_and_b32 {v(t+8)}, 3, {v(VL)}
        v_lshl_add_u32 {v(t+7)}, {v(t+8)}, 2, {v(t+7)}
        v_add_u32 {v(t+7)}, s60, {v(t+7)}
        v_mul_u32_u24 {v(t+8)}, 272, {v(t+11)}
        v_lshl_add_u32 {v(t+8)}, {v(t+10)}, 4, {v(t+8)}
        v_add_u32 {v(t+8)}, s60, {v(t+8)}
        s_lshl_b32 s60, {s(S_TC)}, 2
        s_add_u32 s60, s60, {s(S_W)}
        s_mul_i32 s60, s60, {HREC}
        s_mul_i32 s61, {s(S_CG)}, {20*256}
        s_add_u32 s60, s60, s61
        s_add_u32 s60, s60, {WS_H}
        v_lshl_add_u32 {v(t+9)}, {v(VL)}, 4, s60
        """)
    def scan1(self):
        a = self.a; t = self.t; X = self.X
        A0, A1 = X, X + 12
        for (dst, src, r) in ((A0, None, 1), (A1, A0, 2), (A0, A1, 3)):
            for g in range(5):
                re = self.acc + 8 * g; im = re + 4
                hr, hi = (re, im) if src is None else (src + 2*g, src + 2*g + 1)
                self.cfma2(dst + 2*g, dst + 2*g + 1, self.L1 + 2*g, hr, hi, re + r, im + r)
        a(f"""
        ds_write_b128 {v(t)}, {v(A0,4)} offset:{L_AG}
        ds_write_b128 {v(t)}, {v(A0+4,4)} offset:{L_AG+16}
        ds_write_b64 {v(t+1)}, {v(A0+8,2)} offset:{L_AG}
        """)
        self.bar()
    def serial(self):
        a = self.a; t = self.t; X = self.X; Y = self.F[0]
        lb = a.label("lookback"); dn = a.label("serdone")
        a(f"""
        s_and_b32 s60, {s(S_W)}, 1
        s_lshl_b32 s62, {s(S_CG)}, 1
        s_add_u32 s62, s62, s60
        s_mul_i32 s62, s62, {32*FSTR}
        s_add_u32 s62, s62, {FL_AGG}
        v_mov_b32 {v(t+12)}, 0
        v_mov_b32 {v(t+13)}, 0
        s_cmp_ge_u32 {s(S_W)}, 2
        s_cbranch_scc1 {lb}
        """)
        for sg in range(16):
            a(f"ds_read_b64 {v(X+2*sg,2)}, {v(t+4)} offset:{L_AG + 640*sg}")
        a("s_waitcnt lgkmcnt(0)")
        for sg in range(1, 16):
            self.cfma2(X+2*sg, X+2*sg+1, self.LS, X+2*sg-2, X+2*sg-1, X+2*sg, X+2*sg+1)
        a(f"""
        s_lshl_b32 s61, {s(S_TC)}, 13
        s_add_u32 s61, s61, {WS_AGG}
        buffer_store_dwordx2 {v(X+30,2)}, {v(t+5)}, {s(SW,4)}, s61 offen sc1
        s_mul_i32 s61, {s(S_TC)}, {FSTR}
        s_add_u32 s62, s62, s61
        ds_write_b64 {v(t+4)}, {v(t+12,2)} offset:{L_AG}
        """)
        for sg in range(15):
            a(f"ds_write_b64 {v(t+4)}, {v(X+2*sg,2)} offset:{L_AG + 640*(sg+1)}")
        a("s_waitcnt vmcnt(0)")
        set_flag(a, 62, t + 14)
        a(f"s_branch {dn}\n{lb}:")
        ld = a.label("lbld"); h0 = a.label("lbh0"); h1 = a.label("lbh1")
        a(f"""
        s_cmp_eq_u32 {s(S_TC)}, 0
        s_cbranch_scc1 {h0}
        s_sub_u32 s61, {s(S_TC)}, 1
        v_min_u32 {v(t+14)}, s61, {v(VL)}
        v_mul_u32_u24 {v(t+14)}, {FSTR}, {v(t+14)}
        v_add_u32 {v(t+14)}, s62, {v(t+14)}
        """)
        poll(a, t + 14, t + 15, sleep=opt("lbsleep", 4))
        a(f"s_mov_b32 s61, {WS_AGG}")
        for c in range(31):
            a(f"buffer_load_dwordx2 {v(Y+2*c,2)}, {v(t+5)}, {s(SW,4)}, s61 offen sc1")
            if c < 30: a(f"s_add_u32 s61, s61, 8192\ns_cmp_eq_u32 {s(S_TC)}, {c+1}\ns_cbranch_scc1 {ld}")
        a(f"{ld}:\ns_waitcnt vmcnt(0)")
        for c in range(31):
            src, dst = (t + 12, t + 14) if c % 2 == 0 else (t + 14, t + 12)
            self.cfma2(dst, dst + 1, self.LS, src, src + 1, Y + 2*c, Y + 2*c + 1)
            if c < 30: a(f"s_cmp_eq_u32 {s(S_TC)}, {c+1}\ns_cbranch_scc1 {h1 if c % 2 == 0 else h0}")
        a(f"{h1}:\nv_mov_b32 {v(t+12)}, {v(t+14)}\nv_mov_b32 {v(t+13)}, {v(t+15)}")
        a(f"{h0}:\nds_write_b64 {v(t+4)}, {v(t+12,2)} offset:{L_CIN}")
        a(f"{dn}:")
        self.bar(sleep=2)
    def scan2(self):
        a = self.a; t = self.t; X = self.X
        PRE, CI, H0, H1 = X, X + 12, X + 24, X + 36
        P = self.F[0]
        a(f"""
        ds_read_b128 {v(PRE,4)}, {v(t)} offset:{L_AG}
        ds_read_b128 {v(PRE+4,4)}, {v(t)} offset:{L_AG+16}
        ds_read_b64 {v(PRE+8,2)}, {v(t+1)} offset:{L_AG}
        ds_read_b128 {v(CI,4)}, {v(t+2)} offset:{L_CIN}
        ds_read_b128 {v(CI+4,4)}, {v(t+2)} offset:{L_CIN+16}
        ds_read_b64 {v(CI+8,2)}, {v(t+3)} offset:{L_CIN}
        s_waitcnt lgkmcnt(0)
        """)
        for g in range(5):
            self.cfma2(H0+2*g, H0+2*g+1, self.LP+2*g, CI+2*g, CI+2*g+1, PRE+2*g, PRE+2*g+1)
        src, dst = H0, H1
        for r in range(4):
            for g in range(5):
                re = self.acc + 8 * g; im = re + 4
                self.cfma2(dst+2*g, dst+2*g+1, self.L1+2*g, src+2*g, src+2*g+1, re + r, im + r)
            for g in range(5):
                p = P + 4 * r + g if g < 4 else P + 16 + r
                a(f"v_cvt_pk_bf16_f32 {v(p)}, {v(dst+2*g)}, {v(dst+2*g+1)}")
            a(f"ds_write_b128 {v(t+6)}, {v(P+4*r,4)} offset:{16*r}")
            a(f"ds_write_b32 {v(t+7)}, {v(P+16+r)} offset:{16*272 + 16*r}")
            src, dst = dst, src
        Z = self.F[1]
        for i in range(5):
            a(f"ds_read_b128 {v(Z+4*i,4)}, {v(t+8)} offset:{4*272*i}")
        a("s_movk_i32 s60, 0x1000")
        for i in range(5):
            a(f"s_waitcnt lgkmcnt({4-i})")
            a(f"buffer_store_dwordx4 {v(Z+4*i,4)}, {v(t+9)}, {s(SW,4)}, {'0' if i < 4 else 's60'} offen offset:{1024*(i%4)} sc1")

class B2:
    NR = 4
    def __init__(self, a, bar):
        self.a = a; self.bar = bar
        R = Regs(8)
        self.t = R.alloc("t", 8, 4)
        self.vc = R.alloc("vc", 9)
        self.acc = R.alloc("acc", 80, 4)
        self.F = [R.alloc(f"F{i}", 36, 4) for i in range(self.NR)]
        self.SO, self.ST = 48, 52
    def setup(self):
        a = self.a; vc = self.vc
        a(f"""
        s_mul_i32 s60, {s(S_W)}, {40*256}
        s_mul_i32 s61, {s(S_CG)}, {5*HREC}
        s_add_u32 s61, s61, s60
        s_add_u32 s61, s61, {WS_C}
        v_lshl_add_u32 {v(vc)}, {v(VL)}, 4, s61
        s_mul_i32 s61, {s(S_TC)}, {4*HREC}
        s_add_u32 s61, s61, s60
        s_add_u32 s61, s61, {WS_H}
        v_lshl_add_u32 {v(vc+5)}, {v(VL)}, 4, s61
        """)
        for i in range(1, 5): a(f"v_add_u32 {v(vc+i)}, {i*HREC}, {v(vc)}")
        for i in range(1, 4): a(f"v_add_u32 {v(vc+5+i)}, {i*HREC}, {v(vc+5)}")
    def poll(self):
        a = self.a; t = self.t; sk = a.label("nopb")
        a(f"""
        s_cmp_lg_u32 {s(S_W)}, 1
        s_cbranch_scc1 {sk}
        s_mul_i32 s60, {s(S_CG)}, {32*FSTR}
        s_add_u32 s60, s60, {FL_H}
        v_mul_u32_u24 {v(t)}, {FSTR}, {v(VL)}
        v_add_u32 {v(t)}, s60, {v(t)}
        s_mul_i32 s60, {s(S_TC)}, {8*FSTR}
        s_add_u32 s60, s60, {FL_H}
        v_and_b32 {v(t+1)}, 7, {v(VL)}
        v_mul_u32_u24 {v(t+1)}, {FSTR}, {v(t+1)}
        v_cmp_gt_u32 vcc, 32, {v(VL)}
        v_add_u32 {v(t+1)}, s60, {v(t+1)}
        s_nop 0
        v_cndmask_b32 {v(t)}, {v(t+1)}, {v(t)}, vcc
        """)
        poll(a, t, t + 1, sleep=8)
        a(f"{sk}:\ns_waitcnt vmcnt(0)")
    def ld(self, step):
        F = self.F[step % self.NR]
        out = ["s_lshl_b32 s60, s40, 10"]
        out += [f"buffer_load_dwordx4 {v(F+4*i,4)}, {v(self.vc+i)}, {s(SW,4)}, s60 offen sc1" for i in range(9)]
        out += ["s_add_u32 s40, s40, 1\ns_cmp_eq_u32 s40, 10\ns_cselect_b32 s40, 0, s40"]
        return out
    def pre(self):
        for st in range(self.NR):
            for x in self.ld(st): self.a(x)
    def gemm(self):
        a = self.a; NR = self.NR
        for st in range(10):
            a(f"s_waitcnt vmcnt({9 * (min(st + NR, 10) - 1 - st)})")
            F = self.F[st % NR]
            for tt in range(4):
                for i in (range(5) if tt % 2 == 0 else range(4, -1, -1)):
                    d = self.acc + 20 * tt + 4 * i
                    a(f"v_mfma_f32_16x16x32_bf16 {v(d,4)}, {v(F+4*i,4)}, {v(F+20+4*tt,4)}, {'0' if st == 0 else v(d,4)}")
            if st + NR < 10:
                for x in self.ld(st + NR): a(x)
            if st == 7: self.epi_load()
    def epi_load(self):
        pass
    def epi(self):
        a = self.a; t = self.t; acc = self.acc
        E = self.F[2]; Z = self.F[0]
        a.srd(self.ST, P_BX, 2048 * 1280)
        a.srd(self.SO, P_DSK, 1280)
        a(f"""
        s_lshl_b32 s60, {s(S_TC)}, 2
        s_add_u32 s60, s60, {s(S_W)}
        s_mul_i32 s61, s60, {16*1280}
        s_mul_i32 s62, {s(S_CG)}, 160
        s_add_u32 s61, s61, s62
        s_mul_i32 s63, s60, {16*5120}
        s_lshl_b32 s6, s62, 1
        s_add_u32 s63, s63, s6
        s_add_u32 s63, s63, 2560
        v_and_b32 {v(t)}, 15, {v(VL)}
        v_lshrrev_b32 {v(t+1)}, 4, {v(VL)}
        v_lshlrev_b32 {v(t+2)}, 3, {v(t+1)}
        v_mul_u32_u24 {v(t+3)}, 1280, {v(t)}
        v_add_u32 {v(t+3)}, {v(t+3)}, {v(t+2)}
        """)
        for i in range(5):
            a(f"buffer_load_dwordx2 {v(E+2*i,2)}, {v(t+3)}, {s(self.ST,4)}, s61 offen offset:{32*i}")
            a(f"buffer_load_dwordx2 {v(E+10+2*i,2)}, {v(t+2)}, {s(self.SO,4)}, s62 offen offset:{32*i}")
        a.srd(self.SO, P_OUT, 2048 * 5120)
        l1 = a.label("b2a"); l2 = a.label("b2b"); l3 = a.label("b2c"); l4 = a.label("b2d")
        a(f"""
        v_mul_u32_u24 {v(t+3)}, 5120, {v(t)}
        v_lshl_add_u32 {v(t+3)}, {v(t+1)}, 4, {v(t+3)}
        s_mul_i32 s60, {s(S_W)}, 10240
        s_add_u32 s60, s60, {L_BRED}
        v_lshl_add_u32 {v(t)}, {v(VL)}, 4, s60
        s_xor_b32 s60, {s(S_W)}, 1
        s_mul_i32 s60, s60, 10240
        s_add_u32 s60, s60, {L_BRED}
        v_lshl_add_u32 {v(t+1)}, {v(VL)}, 4, s60
        s_xor_b32 s60, {s(S_W)}, 3
        s_mul_i32 s60, s60, 10240
        s_add_u32 s60, s60, {L_BRED}
        v_lshl_add_u32 {v(t+2)}, {v(VL)}, 4, s60
        s_bitcmp1_b32 {s(S_W)}, 0
        s_cbranch_scc1 {l1}
        """)
        for par in range(2):
            if par: a(f"{l1}:")
            for u in range(2):
                for i in range(5):
                    a(f"ds_write_b128 {v(t)}, {v(acc + 20*(2*u + 1 - par) + 4*i,4)} offset:{1024*(5*u+i)}")
            self.bar(count=(par == 0))
            for k in range(10):
                a(f"ds_read_b128 {v(Z+4*k,4)}, {v(t+1)} offset:{1024*k}")
            for k in range(10):
                u, i = divmod(k, 5)
                a(f"s_waitcnt lgkmcnt({9-k})")
                for r in range(4):
                    a(f"v_add_f32 {v(Z+4*k+r)}, {v(Z+4*k+r)}, {v(acc + 20*(2*u + par) + 4*i + r)}")
            if not par: a(f"s_branch {l2}")
        a(f"{l2}:\ns_bitcmp1_b32 {s(S_W)}, 1\ns_cbranch_scc1 {l3}")
        for hi in range(2):
            if hi: a(f"{l3}:")
            for i in range(5):
                a(f"ds_write_b128 {v(t+1)}, {v(Z + 20*(1-hi) + 4*i,4)} offset:{1024*i}")
            self.bar(count=(hi == 0))
            for i in range(5):
                a(f"ds_read_b128 {v(acc+4*i,4)}, {v(t+2)} offset:{1024*i}")
            a("s_waitcnt vmcnt(0)")
            for i in range(5):
                for r in range(4):
                    x = E + 2 * i + (r >> 1); d = x + 10
                    if r & 1: a(f"v_and_b32 {v(t+4)}, 0xffff0000, {v(x)}\nv_and_b32 {v(t+5)}, 0xffff0000, {v(d)}")
                    else: a(f"v_lshlrev_b32 {v(t+4)}, 16, {v(x)}\nv_lshlrev_b32 {v(t+5)}, 16, {v(d)}")
                    a(f"v_fmac_f32 {v(Z+20*hi+4*i+r)}, {v(t+4)}, {v(t+5)}")
                a(f"s_waitcnt lgkmcnt({4-i})")
                for r in range(4):
                    a(f"v_add_f32 {v(acc+4*i+r)}, {v(acc+4*i+r)}, {v(Z+20*hi+4*i+r)}")
                a(f"buffer_store_dwordx4 {v(acc+4*i,4)}, {v(t+3)}, {s(self.SO,4)}, s63 offen offset:{64*i}")
            if not hi: a(f"s_branch {l4}")
        a(f"{l4}:")
```

```python
from asmlib import *
import math, struct, os
P_AX, P_WQKV, P_WO, P_BX, P_LRE, P_LIM, P_BRE, P_BIM = 8, 10, 12, 14, 16, 18, 20, 22
P_CRE, P_CIM, P_LDT, P_DSK, P_OUT, P_DBG, P_WS = 24, 26, 28, 30, 32, 34, 36
S_WAVE, S_W, S_NONCE = 3, 4, 5
SW, SD = 44, 96
VL, VBW, VBR, VGEN, VBT = 1, 2, 3, 4, 5
QREC = 40960
KVREC = 83200
WS_Q = 0
WS_KV = WS_Q + 64 * QREC
WS_O = WS_KV + 64 * KVREC
OREC = 20480
WS_H = WS_O + 128 * OREC
HREC = 40960
WS_C = WS_H + 128 * HREC
WS_AGG = WS_C + 40 * HREC
WS_FLAG = WS_AGG + 32 * 8192
FSTR = int(os.environ.get('FSTR', '128'))
FL_EPOCH = WS_FLAG
FL_QKV = WS_FLAG + 4096
FL_AGG = FL_QKV + 256 * FSTR
FL_H = FL_AGG + 512 * FSTR
FL_O = FL_H + 256 * FSTR
WS_END = WS_FLAG + (1 << 20)
L_COEF, L_AG, L_CIN = 0, 640, 640 + 10240
L_BAR = 11520
L_RING = 12288
L_WO = 12288
L_ARED = L_WO + 81920
L_BRED = 121088
LDS_TOTAL = 162048
def f2u(x): return struct.unpack("<I", struct.pack("<f", x))[0]
QSCALE = f2u(math.log2(math.e) / math.sqrt(20.0))
LOG2E = f2u(math.log2(math.e)); INV2PI = f2u(1.0 / (2 * math.pi))
SPIN = 1 << int(os.environ.get('SPINLOG', '16'))
OPT = dict(x.split("=") if "=" in x else (x, "1") for x in os.environ.get("OPT", "").split(",") if x)
def opt(k, d=0): return int(OPT.get(k, d))

STAMPS = int(os.environ.get("STAMPS", "0"))
ST_BASE = 72
def stamp(a, i):
    if not STAMPS: return
    r = ST_BASE + 2 * (i % 12)
    a(f"s_memrealtime s[70:71]\ns_memtime s[68:69]\ns_waitcnt lgkmcnt(0)\ns_mov_b32 {s(r)}, s70\ns_mov_b32 {s(r+1)}, s68")
def stamp_dump(a, idxs, vtmp=6):
    if not STAMPS: return
    if STAMPS == 2:
        sk = a.label("nod")
        a(f"s_mov_b64 exec, -1\ns_cmp_lg_u32 s2, {opt('dwg', 100)}\ns_cbranch_scc1 {sk}\ns_cmp_lg_u32 {s(S_WAVE)}, {opt('dwave', 0)}\ns_cbranch_scc1 {sk}\nv_mov_b32 {v(vtmp)}, 0")
        for i in idxs:
            if i == 0: continue
            r = ST_BASE + 2 * (i % 12)
            a(f"s_sub_u32 s67, {s(r)}, {s(ST_BASE)}\nv_mov_b32 {v(vtmp+1)}, s67\nbuffer_store_dword {v(vtmp+1)}, {v(vtmp)}, {s(SD,4)}, 0 offen offset:{4*i}\ns_nop 1")
        a(f"{sk}:")
        return
    a(f"""
    s_mov_b64 exec, -1
    s_mov_b32 s68, s{P_WS}
    s_mov_b32 s69, s{P_WS+1}
    s_mov_b32 s70, {WS_END + (1<<20)}
    s_mov_b32 s71, 0x00020000
    s_lshl_b32 s67, s2, 3
    s_add_u32 s67, s67, {s(S_WAVE)}
    s_lshl_b32 s67, s67, 8
    s_add_u32 s67, s67, {WS_END}
    v_mov_b32 {v(vtmp)}, 0
    """)
    for i in idxs:
        r = ST_BASE + 2 * (i % 12)
        a(f"v_mov_b32 {v(vtmp+1)}, {s(r)}\nbuffer_store_dword {v(vtmp+1)}, {v(vtmp)}, s[68:71], s67 offen offset:{4*i}\ns_nop 1")
        a(f"v_mov_b32 {v(vtmp+1)}, {s(r+1)}\nbuffer_store_dword {v(vtmp+1)}, {v(vtmp)}, s[68:71], s67 offen offset:{128+4*i}\ns_nop 1")

def swbar_setup(a, role):
    a(f"""
    s_lshl_b32 s6, {s(S_W)}, 2
    s_add_u32 s6, s6, {L_BAR + 16*role}
    v_mov_b32 {v(VBW)}, s6
    v_and_b32 {v(VBR)}, 3, {v(VL)}
    v_lshlrev_b32 {v(VBR)}, 2, {v(VBR)}
    v_add_u32 {v(VBR)}, {L_BAR + 16*role}, {v(VBR)}
    v_mov_b32 {v(VGEN)}, 0
    """)
def lds_wait(a, cmp_src, off=0, sleep=0, addr=VBR, prio=None):
    lp = a.label("lw"); dn = a.label("lwd")
    a(f"s_mov_b32 s7, {SPIN}\n{lp}:")
    a(f"ds_read_b32 {v(VBT)}, {v(addr)} offset:{off}\ns_sub_u32 s7, s7, 1\ns_waitcnt lgkmcnt(0)")
    a(f"v_cmp_gt_u32 vcc, {cmp_src}, {v(VBT)}\ns_cbranch_vccz {dn}")
    if sleep: a(f"s_sleep {sleep}")
    a(f"s_cmp_lg_u32 s7, 0\ns_cbranch_scc1 {lp}\n{dn}:")
class SwBar:
    def __init__(self, a): self.a = a; self.n = 0
    def __call__(self, sleep=0, count=True):
        a = self.a
        if count: self.n += 1
        a(f"v_add_u32 {v(VGEN)}, 1, {v(VGEN)}\nds_write_b32 {v(VBW)}, {v(VGEN)}")
        lds_wait(a, v(VGEN), sleep=sleep)

def nonce_load(a, vt):
    a(f"v_mov_b32 {v(vt)}, 0\nbuffer_load_dword {v(vt+1)}, {v(vt)}, {s(SD,4)}, 0 offen sc1")
def nonce_finish(a, vt):
    lp = a.label("nonce"); dn = a.label("nonced")
    a(f"""
    s_mov_b32 s7, {SPIN}
    {lp}:
    v_readfirstlane_b32 {s(S_NONCE)}, {v(vt+1)}
    s_sub_u32 s7, s7, 1
    s_cmp_lg_u32 {s(S_NONCE)}, 0
    s_cbranch_scc1 {dn}
    buffer_load_dword {v(vt+1)}, {v(vt)}, {s(SD,4)}, 0 offen sc1
    s_cmp_lg_u32 s7, 0
    s_waitcnt vmcnt(0)
    s_cbranch_scc1 {lp}
    {dn}:
    """)
def make_nonce(a, vt):
    a(f"""
    v_mov_b32 {v(vt)}, {FL_EPOCH}
    buffer_load_dword {v(vt+1)}, {v(vt)}, {s(SW,4)}, 0 offen sc1
    s_mov_b32 s6, 0x9e3779b1
    s_waitcnt vmcnt(0)
    v_mul_lo_u32 {v(vt+1)}, {v(vt+1)}, s6
    v_add_u32 {v(vt+1)}, 0x7f4a7c15, {v(vt+1)}
    v_max_u32 {v(vt+1)}, 1, {v(vt+1)}
    v_mov_b32 {v(vt+2)}, 0
    s_mov_b64 exec, 1
    buffer_store_dword {v(vt+1)}, {v(vt+2)}, {s(SD,4)}, 0 offen sc1
    buffer_store_dword {v(vt+1)}, {v(vt)}, {s(SW,4)}, 0 offen sc1
    s_mov_b64 exec, -1
    """)
def poll(a, vaddr, vtmp, sleep=0):
    lp = a.label("poll"); dn = a.label("polld")
    a(f"""
    s_mov_b32 s7, {SPIN}
    {lp}:
    buffer_load_dword {v(vtmp)}, {v(vaddr)}, {s(SW,4)}, 0 offen sc1
    s_sub_u32 s7, s7, 1
    s_waitcnt vmcnt(0)
    v_cmp_ne_u32 vcc, {s(S_NONCE)}, {v(vtmp)}
    s_cbranch_vccz {dn}
    """)
    if sleep: a(f"s_sleep {sleep}")
    a(f"s_cmp_lg_u32 s7, 0\ns_cbranch_scc1 {lp}\n{dn}:")
def set_flag(a, s_off, vt, only_wave=None):
    sk = a.label("nof")
    if only_wave is not None: a(f"s_cmp_lg_u32 {s(S_W)}, {only_wave}\ns_cbranch_scc1 {sk}")
    a(f"""
    v_mov_b32 {v(vt)}, {s(S_NONCE)}
    v_and_b32 {v(vt+1)}, {FSTR//4-1}, {v(VL)}
    v_lshlrev_b32 {v(vt+1)}, 2, {v(vt+1)}
    buffer_store_dword {v(vt)}, {v(vt+1)}, {s(SW,4)}, {s(s_off)} offen sc1
    """)
    if only_wave is not None: a(f"{sk}:")
```

```python
import sys
from fcommon import *
from fa import *
from fb import *
NAME = "concat_heads__mha_block__ssm_conv_s5__prompt_kernel"
def gen():
    a = Asm()
    S_IDLE = 66
    stamp(a, 0)
    a(f"""
    s_load_dwordx16 s[8:23], s[0:1], 0
    s_load_dwordx8 s[24:31], s[0:1], 64
    s_load_dwordx4 s[32:35], s[0:1], 96
    s_load_dwordx2 s[36:37], s[0:1], 112
    s_cmp_ge_u32 s2, 256
    s_cbranch_scc1 Lend
    v_lshrrev_b32 v2, 6, v0
    v_and_b32 {v(VL)}, 63, v0
    v_readfirstlane_b32 {s(S_WAVE)}, v2
    s_lshr_b32 s40, s2, 3
    s_cmp_ge_u32 s40, 30
    s_cselect_b32 {s(S_IDLE)}, 1, 0
    s_and_b32 s41, s2, 1
    s_mul_i32 s6, s41, 30
    s_add_u32 s40, s40, s6
    s_lshr_b32 {s(S_I1)}, s40, 2
    s_and_b32 s40, s40, 3
    s_bfe_u32 s6, s2, 0x20001
    s_lshl_b32 s7, s6, 2
    s_add_u32 {s(S_I0)}, s40, s7
    s_lshl_b32 s6, s6, 3
    s_bfe_u32 s7, s2, 0x30003
    s_add_u32 {s(S_TC)}, s6, s7
    s_lshl_b32 s41, s41, 2
    s_bfe_u32 s7, s2, 0x20006
    s_add_u32 {s(S_CG)}, s41, s7
    s_and_b32 {s(S_W)}, {s(S_WAVE)}, 3
    s_cmp_lt_u32 {s(S_WAVE)}, 4
    s_cbranch_scc1 LroleA
    """)
    barB = SwBar(a)
    B = B1(a, barB)
    B.ld_valu()
    a("s_waitcnt lgkmcnt(0)")
    B.ld_srd(S_IDLE)
    B.ld_issue(0)
    PL = opt("plate", 2)
    if PL == 0: B.params_load()
    B.ld_issue(1)
    stamp(a, 1)
    swbar_setup(a, 1)
    a.srd(SW, P_WS, WS_END); a.srd(SD, P_DBG, 256)
    B.gemm_setup()
    for st in range(10):
        n = (8 if st < 9 else 7) + (9 if (st == PL or (PL and st == PL - 1)) else 0)
        if opt("b1late") and st == 9: n = 0
        a(f"s_waitcnt vmcnt({n}) lgkmcnt(0)\ns_barrier")
        if st == 0: stamp(a, 2)
        if st + 2 < 10: B.ld_issue(st + 2)
        elif not opt("b1late"):
            if st == 8: B.gemm_srd()
            B.issue(st - 8)
        if PL and st + 2 == PL: B.params_load()
        if PL + 1 <= st <= PL + 6: B.params_calc(st - PL - 1)
        if st == PL + 7: B.scan_setup()
    a("s_waitcnt lgkmcnt(0)\ns_barrier")
    if opt("b1late"):
        a(f"v_subrev_u32 v6, 16, {v(VBR)}")
        lds_wait(a, str(opt("b1late")), addr=6, sleep=1)
        B.gemm_srd(); B.issue(0); B.issue(1)
    B.gemm()
    stamp(a, 4)
    if opt("bprio", 1): a("s_setprio 3")
    nonce_load(a, 6)
    a("s_nop 5")
    B.scan1()
    a("s_waitcnt vmcnt(0)")
    nonce_finish(a, 6)
    B.serial()
    stamp(a, 5)
    B.scan2()
    C = B2(a, barB)
    a(f"""
    s_lshl_b32 s62, {s(S_TC)}, 3
    s_add_u32 s62, s62, {s(S_CG)}
    s_mul_i32 s62, s62, {FSTR}
    s_add_u32 s62, s62, {FL_H}
    s_lshr_b32 {s(S_I1)}, s2, 5
    """)
    wo_addr(a, C.acc, C.acc + 6, 48)
    C.setup()
    a(f"v_subrev_u32 v6, 16, {v(VBR)}")
    lds_wait(a, "2", addr=6)
    a("s_waitcnt vmcnt(0)")
    barB()
    set_flag(a, 62, 6, only_wave=0)
    stamp(a, 6)
    wo_load(a, C.acc, 48, S_I1, [0, 1, 2, 3])
    C.poll()
    barB(sleep=4)
    G_WO = barB.n
    stamp(a, 7)
    C.pre()
    lds_wait(a, "1", off=16, sleep=opt("gsleep", 4), addr=VBW)
    if opt("bprio", 1): a("s_setprio 0")
    stamp(a, 8)
    C.gemm()
    stamp(a, 9)
    C.epi()
    if STAMPS: a("s_waitcnt vmcnt(0)")
    stamp(a, 10); stamp_dump(a, range(0, 11))
    a("Lend:\ns_endpgm")
    a(".p2align 6\nLroleA:")
    barA = SwBar(a)
    A = A1(a)
    swbar_setup(a, 0)
    a(f"""
    v_lshlrev_b32 v6, 2, {v(VL)}
    ds_write_b32 v6, {v(VGEN)} offset:{L_BAR}
    """)
    if opt("codepf", 1):
        a(f"""
        s_cmp_lg_u32 {s(S_W)}, 0
        s_cbranch_scc1 Lnopf
        s_getpc_b64 s[60:61]
        Lpc:
        s_add_u32 s60, s60, {NAME}-Lpc
        s_addc_u32 s61, s61, -1
        s_lshr_b32 s62, s2, 3
        s_lshl_b32 s62, s62, 4
        v_and_b32 v6, 15, {v(VL)}
        v_add_u32 v6, s62, v6
        v_lshlrev_b32 v6, 7, v6
        v_min_u32 v6, Lcode_end-{NAME}-4, v6
        v_mov_b32 v7, s61
        v_add_co_u32 v6, vcc, s60, v6
        s_nop 1
        v_addc_co_u32 v7, vcc, 0, v7, vcc
        global_load_dword v6, v[6:7], off
        Lnopf:
        """)
    A.setup()
    a("s_waitcnt lgkmcnt(0)")
    a.srd(SW, P_WS, WS_END); a.srd(SD, P_DBG, 256)
    A.cprep_addr()
    a(f"s_cmp_lg_u32 {s(S_IDLE)}, 0\ns_cbranch_scc1 Lidle")
    a(f"s_cmp_ge_u32 {s(S_I1)}, 10\ns_cbranch_scc1 Lvtile")
    A.loop(0); stamp(a, 2)
    n = A.epilogue(0)
    a(f"s_waitcnt vmcnt({n})\ns_branch Lafter")
    a("Lidle:")
    a(f"s_cmp_lg_u32 s2, 255\ns_cbranch_scc1 Lidle2\ns_cmp_lg_u32 {s(S_W)}, 0\ns_cbranch_scc1 Lidle2")
    if opt("zinit"):
        a(f"v_lshlrev_b32 v6, 4, {v(VL)}\nv_add_u32 v6, {FL_QKV}, v6")
        for r in range(4): a(f"v_mov_b32 {v(A.acc+r)}, 0")
        a("s_mov_b32 s60, 0")
        for i in range(256 * FSTR // 1024):
            a(f"buffer_store_dwordx4 {v(A.acc,4)}, v6, {s(SW,4)}, s60 offen sc1\ns_add_u32 s60, s60, 1024")
    make_nonce(a, A.t)
    a("Lidle2:")
    for i in range(11): a("s_barrier")
    A.cprep_load2()
    stamp(a, 1); stamp(a, 2)
    a("s_waitcnt vmcnt(0)\ns_branch Lafter")
    a("Lvtile:")
    A.loop(1); stamp(a, 2)
    n = A.epilogue(1)
    a(f"s_waitcnt vmcnt({n})")
    a("Lafter:")
    nonce_finish(a, A.nn)
    A.cprep_calc()
    a(f"""
    s_lshl_b32 s40, {s(S_I1)}, 4
    s_add_u32 s40, s40, {s(S_I0)}
    s_mul_i32 s40, s40, {FSTR}
    s_add_u32 s40, s40, {FL_QKV}
    s_and_b32 {s(S_I0)}, s2, 7
    s_lshl_b32 {s(S_I0)}, {s(S_I0)}, 2
    s_bfe_u32 s6, s2, 0x20003
    s_add_u32 {s(S_I0)}, {s(S_I0)}, s6
    s_lshr_b32 {s(S_I1)}, s2, 5
    """)
    T = A2(a, barA)
    T.setup(); T.epi_setup(); T.zero()
    a("s_setprio 2")
    a("s_waitcnt vmcnt(2)")
    barA()
    stamp(a, 3)
    a(f"s_cmp_lg_u32 {s(S_IDLE)}, 0\ns_cbranch_scc1 Lnoqf")
    set_flag(a, 40, 6, only_wave=0)
    a("Lnoqf:")
    if opt("pdelay"): a(f"s_sleep {opt('pdelay')}")
    T.poll_qkv()
    barA()
    stamp(a, 4)
    T.load_q()
    a("Lmain:")
    T.main()
    stamp(a, 6)
    lds_wait(a, str(G_WO), off=16)
    a("s_nop 4")
    T.reduce_store("Lretry")
    stamp(a, 7)
    a(f"""
    s_lshl_b32 s40, {s(S_I1)}, 5
    s_add_u32 s40, s40, {s(S_I0)}
    s_mul_i32 s40, s40, {FSTR}
    s_add_u32 s40, s40, {FL_O}
    """)
    set_flag(a, 40, 6, only_wave=0)
    wo_addr(a, 8, 13, 48)
    wo_load(a, 8, 48, S_I1, [4])
    P = A3(a)
    P.setup()
    P.pre()
    P.poll_o()
    barA()
    stamp(a, 8)
    P.load_o()
    P.compute()
    stamp(a, 9)
    if STAMPS: a("s_waitcnt vmcnt(0)")
    stamp(a, 10); stamp_dump(a, range(0, 11))
    a("s_endpgm")
    a("Lretry:")
    a(f"s_mov_b32 {s(T.sTry)}, 1")
    T.maxpass()
    T.zero()
    a("s_branch Lmain")
    a("Lcode_end:")
    head = open("concat_heads__mha_block__ssm_conv_s5__prompt.s.ref").read().split("; Override launch")[0]
    return (head + f"; @launch grid=(256,1,1) block=(512,1,1) lds={LDS_TOTAL}\n" + '.amdgcn_target "amdgcn-amd-amdhsa--gfx950"\n'
            + kernel_header(NAME) + a.text() + kernel_desc(NAME, 256, 102))
if __name__ == "__main__":
    open(sys.argv[1], "w").write(gen())
```

```python
from asmlib import *
import math, struct, os
P_AX, P_WQKV, P_WO, P_BX, P_LRE, P_LIM, P_BRE, P_BIM = 8, 10, 12, 14, 16, 18, 20, 22
P_CRE, P_CIM, P_LDT, P_DSK, P_OUT, P_DBG, P_WS = 24, 26, 28, 30, 32, 34, 36
S_WAVE, S_W, S_NONCE = 3, 4, 5
SW, SD = 44, 96
VL, VBW, VBR, VGEN, VBT = 1, 2, 3, 4, 5
QREC = 40960
KVREC = 83200
WS_Q = 0
WS_KV = WS_Q + 64 * QREC
WS_O = WS_KV + 64 * KVREC
OREC = 20480
WS_H = WS_O + 128 * OREC
HREC = 40960
WS_C = WS_H + 128 * HREC
WS_AGG = WS_C + 40 * HREC
WS_FLAG = WS_AGG + 32 * 8192
FSTR = int(os.environ.get('FSTR', '128'))
FL_EPOCH = WS_FLAG
FL_QKV = WS_FLAG + 4096
FL_AGG = FL_QKV + 256 * FSTR
FL_H = FL_AGG + 512 * FSTR
FL_O = FL_H + 256 * FSTR
WS_END = WS_FLAG + (1 << 20)
L_COEF, L_AG, L_CIN = 0, 640, 640 + 10240
L_BAR = 11520
L_RING = 12288
L_WO = 12288
L_ARED = L_WO + 81920
L_BRED = 121088
LDS_TOTAL = 162048
def f2u(x): return struct.unpack("<I", struct.pack("<f", x))[0]
QSCALE = f2u(math.log2(math.e) / math.sqrt(20.0))
LOG2E = f2u(math.log2(math.e)); INV2PI = f2u(1.0 / (2 * math.pi))
SPIN = 1 << int(os.environ.get('SPINLOG', '16'))
OPT = dict(x.split("=") if "=" in x else (x, "1") for x in os.environ.get("OPT", "").split(",") if x)
def opt(k, d=0): return int(OPT.get(k, d))

STAMPS = int(os.environ.get("STAMPS", "0"))
ST_BASE = 72
def stamp(a, i):
    if not STAMPS: return
    r = ST_BASE + 2 * (i % 12)
    a(f"s_memrealtime s[70:71]\ns_memtime s[68:69]\ns_waitcnt lgkmcnt(0)\ns_mov_b32 {s(r)}, s70\ns_mov_b32 {s(r+1)}, s68")
def stamp_dump(a, idxs, vtmp=6):
    if not STAMPS: return
    if STAMPS == 3:
        sk = a.label("nod"); lp = a.label("enc"); r = ST_BASE + 2 * (opt('enc') % 12)
        a(f"""
        s_cmp_lg_u32 s2, {opt('dwg', 100)}
        s_cbranch_scc1 {sk}
        s_cmp_lg_u32 {s(S_WAVE)}, {opt('dwave', 0)}
        s_cbranch_scc1 {sk}
        s_sub_u32 s67, {s(r)}, {s(ST_BASE)}
        s_lshl_b32 s67, s67, 4
        s_add_u32 s67, s67, 10000
        {lp}:
        s_memrealtime s[70:71]
        s_waitcnt lgkmcnt(0)
        s_sub_u32 s70, s70, {s(ST_BASE)}
        s_cmp_lt_u32 s70, s67
        s_cbranch_scc1 {lp}
        {sk}:
        """)
        return
    if STAMPS == 2:
        sk = a.label("nod")
        a(f"s_mov_b64 exec, -1\ns_cmp_lg_u32 s2, {opt('dwg', 100)}\ns_cbranch_scc1 {sk}\ns_cmp_lg_u32 {s(S_WAVE)}, {opt('dwave', 0)}\ns_cbranch_scc1 {sk}\nv_mov_b32 {v(vtmp)}, 0")
        for i in idxs:
            if i == 0: continue
            r = ST_BASE + 2 * (i % 12)
            a(f"s_sub_u32 s67, {s(r)}, {s(ST_BASE)}\nv_mov_b32 {v(vtmp+1)}, s67\nbuffer_store_dword {v(vtmp+1)}, {v(vtmp)}, {s(SD,4)}, 0 offen offset:{4*i}\ns_nop 1")
        a(f"{sk}:")
        return
    a(f"""
    s_mov_b64 exec, -1
    s_mov_b32 s68, s{P_WS}
    s_mov_b32 s69, s{P_WS+1}
    s_mov_b32 s70, {WS_END + (1<<20)}
    s_mov_b32 s71, 0x00020000
    s_lshl_b32 s67, s2, 3
    s_add_u32 s67, s67, {s(S_WAVE)}
    s_lshl_b32 s67, s67, 8
    s_add_u32 s67, s67, {WS_END}
    v_mov_b32 {v(vtmp)}, 0
    """)
    for i in idxs:
        r = ST_BASE + 2 * (i % 12)
        a(f"v_mov_b32 {v(vtmp+1)}, {s(r)}\nbuffer_store_dword {v(vtmp+1)}, {v(vtmp)}, s[68:71], s67 offen offset:{4*i}\ns_nop 1")
        a(f"v_mov_b32 {v(vtmp+1)}, {s(r+1)}\nbuffer_store_dword {v(vtmp+1)}, {v(vtmp)}, s[68:71], s67 offen offset:{128+4*i}\ns_nop 1")

def swbar_setup(a, role):
    a(f"""
    s_lshl_b32 s6, {s(S_W)}, 2
    s_add_u32 s6, s6, {L_BAR + 16*role}
    v_mov_b32 {v(VBW)}, s6
    v_and_b32 {v(VBR)}, 3, {v(VL)}
    v_lshlrev_b32 {v(VBR)}, 2, {v(VBR)}
    v_add_u32 {v(VBR)}, {L_BAR + 16*role}, {v(VBR)}
    v_mov_b32 {v(VGEN)}, 0
    """)
def lds_wait(a, cmp_src, off=0, sleep=0, addr=VBR, prio=None):
    lp = a.label("lw"); dn = a.label("lwd")
    a(f"s_mov_b32 s7, {SPIN}\n{lp}:")
    a(f"ds_read_b32 {v(VBT)}, {v(addr)} offset:{off}\ns_sub_u32 s7, s7, 1\ns_waitcnt lgkmcnt(0)")
    a(f"v_cmp_gt_u32 vcc, {cmp_src}, {v(VBT)}\ns_cbranch_vccz {dn}")
    if sleep: a(f"s_sleep {sleep}")
    a(f"s_cmp_lg_u32 s7, 0\ns_cbranch_scc1 {lp}\n{dn}:")
class SwBar:
    def __init__(self, a): self.a = a; self.n = 0
    def __call__(self, sleep=0, count=True):
        a = self.a
        if count: self.n += 1
        a(f"v_add_u32 {v(VGEN)}, 1, {v(VGEN)}\nds_write_b32 {v(VBW)}, {v(VGEN)}")
        lds_wait(a, v(VGEN), sleep=sleep)

def nonce_load(a, vt):
    a(f"v_mov_b32 {v(vt)}, 0\nbuffer_load_dword {v(vt+1)}, {v(vt)}, {s(SD,4)}, 0 offen sc1")
def nonce_finish(a, vt):
    lp = a.label("nonce"); dn = a.label("nonced")
    a(f"""
    s_mov_b32 s7, {SPIN}
    {lp}:
    v_readfirstlane_b32 {s(S_NONCE)}, {v(vt+1)}
    s_sub_u32 s7, s7, 1
    s_cmp_lg_u32 {s(S_NONCE)}, 0
    s_cbranch_scc1 {dn}
    buffer_load_dword {v(vt+1)}, {v(vt)}, {s(SD,4)}, 0 offen sc1
    s_cmp_lg_u32 s7, 0
    s_waitcnt vmcnt(0)
    s_cbranch_scc1 {lp}
    {dn}:
    """)
def make_nonce(a, vt):
    a(f"""
    v_mov_b32 {v(vt)}, {FL_EPOCH}
    buffer_load_dword {v(vt+1)}, {v(vt)}, {s(SW,4)}, 0 offen sc1
    s_mov_b32 s6, 0x9e3779b1
    s_waitcnt vmcnt(0)
    v_mul_lo_u32 {v(vt+1)}, {v(vt+1)}, s6
    v_add_u32 {v(vt+1)}, 0x7f4a7c15, {v(vt+1)}
    v_max_u32 {v(vt+1)}, 1, {v(vt+1)}
    v_mov_b32 {v(vt+2)}, 0
    s_mov_b64 exec, 1
    buffer_store_dword {v(vt+1)}, {v(vt+2)}, {s(SD,4)}, 0 offen sc1
    buffer_store_dword {v(vt+1)}, {v(vt)}, {s(SW,4)}, 0 offen sc1
    s_mov_b64 exec, -1
    """)
def poll(a, vaddr, vtmp, sleep=0):
    lp = a.label("poll"); dn = a.label("polld")
    a(f"""
    s_mov_b32 s7, {SPIN}
    {lp}:
    buffer_load_dword {v(vtmp)}, {v(vaddr)}, {s(SW,4)}, 0 offen sc1
    s_sub_u32 s7, s7, 1
    s_waitcnt vmcnt(0)
    v_cmp_ne_u32 vcc, {s(S_NONCE)}, {v(vtmp)}
    s_cbranch_vccz {dn}
    """)
    if sleep: a(f"s_sleep {sleep}")
    a(f"s_cmp_lg_u32 s7, 0\ns_cbranch_scc1 {lp}\n{dn}:")
def set_flag(a, s_off, vt, only_wave=None):
    sk = a.label("nof")
    if only_wave is not None: a(f"s_cmp_lg_u32 {s(S_W)}, {only_wave}\ns_cbranch_scc1 {sk}")
    a(f"""
    v_mov_b32 {v(vt)}, {s(S_NONCE)}
    v_and_b32 {v(vt+1)}, {FSTR//4-1}, {v(VL)}
    v_lshlrev_b32 {v(vt+1)}, 2, {v(vt+1)}
    buffer_store_dword {v(vt)}, {v(vt+1)}, {s(SW,4)}, {s(s_off)} offen sc1
    """)
    if only_wave is not None: a(f"{sk}:")
```

```python
from asmlib import *
import math, struct, os
P_AX, P_WQKV, P_WO, P_BX, P_LRE, P_LIM, P_BRE, P_BIM = 8, 10, 12, 14, 16, 18, 20, 22
P_CRE, P_CIM, P_LDT, P_DSK, P_OUT, P_DBG, P_WS = 24, 26, 28, 30, 32, 34, 36
S_WAVE, S_W, S_NONCE = 3, 4, 5
SW, SD = 44, 96
VL, VBW, VBR, VGEN, VBT = 1, 2, 3, 4, 5
QREC = 40960
KVREC = 83200
WS_Q = 0
WS_KV = WS_Q + 64 * QREC
WS_O = WS_KV + 64 * KVREC
OREC = 20480
WS_H = WS_O + 128 * OREC
HREC = 40960
WS_C = WS_H + 128 * HREC
WS_AGG = WS_C + 40 * HREC
WS_FLAG = WS_AGG + 32 * 8192
FSTR = int(os.environ.get('FSTR', '128'))
FL_EPOCH = WS_FLAG
FL_QKV = WS_FLAG + 4096
FL_AGG = FL_QKV + 256 * FSTR
FL_H = FL_AGG + 512 * FSTR
FL_O = FL_H + 256 * FSTR
WS_END = WS_FLAG + (1 << 20)
L_COEF, L_AG, L_CIN = 0, 640, 640 + 10240
L_BAR = 12160
L_RING = 12288
L_WO = 12288
L_XCH = L_RING
L_CRAW = L_RING + 24576
L_ARED = L_WO + 81920
L_BRED = 121088
LDS_TOTAL = 162048
def f2u(x): return struct.unpack("<I", struct.pack("<f", x))[0]
QSCALE = f2u(math.log2(math.e) / math.sqrt(20.0))
LOG2E = f2u(math.log2(math.e)); INV2PI = f2u(1.0 / (2 * math.pi))
SPIN = 1 << int(os.environ.get('SPINLOG', '16'))
OPT = dict(x.split("=") if "=" in x else (x, "1") for x in os.environ.get("OPT", "").split(",") if x)
def opt(k, d=0): return int(OPT.get(k, d))
NRING = opt('nring', 3)

STAMPS = int(os.environ.get("STAMPS", "0"))
ST_BASE = 72
def stamp(a, i, q=False):
    if not STAMPS: return
    if opt("qst") and i > 1 and not q: return
    r = ST_BASE + 2 * (i % 12)
    a(f"s_memrealtime s[70:71]\ns_memtime s[68:69]\ns_waitcnt lgkmcnt(0)\ns_mov_b32 {s(r)}, s70\ns_mov_b32 {s(r+1)}, s68")
def stamp_dump(a, idxs, vtmp=6):
    if not STAMPS: return
    if STAMPS == 3:
        sk = a.label("nod"); lp = a.label("enc"); r = ST_BASE + 2 * (opt('enc') % 12)
        a(f"""
        s_cmp_lg_u32 s2, {opt('dwg', 100)}
        s_cbranch_scc1 {sk}
        s_cmp_lg_u32 {s(S_WAVE)}, {opt('dwave', 0)}
        s_cbranch_scc1 {sk}
        s_sub_u32 s67, {s(r)}, {s(ST_BASE)}
        s_lshl_b32 s67, s67, 4
        s_add_u32 s67, s67, 10000
        {lp}:
        s_memrealtime s[70:71]
        s_waitcnt lgkmcnt(0)
        s_sub_u32 s70, s70, {s(ST_BASE)}
        s_cmp_lt_u32 s70, s67
        s_cbranch_scc1 {lp}
        {sk}:
        """)
        return
    if STAMPS == 2:
        sk = a.label("nod")
        a(f"s_mov_b64 exec, -1\ns_cmp_lg_u32 s2, {opt('dwg', 100)}\ns_cbranch_scc1 {sk}\ns_cmp_lg_u32 {s(S_WAVE)}, {opt('dwave', 0)}\ns_cbranch_scc1 {sk}\nv_mov_b32 {v(vtmp)}, 0")
        for i in idxs:
            if i == 0: continue
            r = ST_BASE + 2 * (i % 12)
            a(f"s_sub_u32 s67, {s(r)}, {s(ST_BASE)}\nv_mov_b32 {v(vtmp+1)}, s67\nbuffer_store_dword {v(vtmp+1)}, {v(vtmp)}, {s(SD,4)}, 0 offen offset:{4*i}\ns_nop 1")
        a(f"{sk}:")
        return
    a(f"""
    s_mov_b64 exec, -1
    s_mov_b32 s68, s{P_WS}
    s_mov_b32 s69, s{P_WS+1}
    s_mov_b32 s70, {WS_END + (1<<20)}
    s_mov_b32 s71, 0x00020000
    s_lshl_b32 s67, s2, 3
    s_add_u32 s67, s67, {s(S_WAVE)}
    s_lshl_b32 s67, s67, 8
    s_add_u32 s67, s67, {WS_END}
    v_mov_b32 {v(vtmp)}, 0
    """)
    for i in idxs:
        r = ST_BASE + 2 * (i % 12)
        a(f"v_mov_b32 {v(vtmp+1)}, {s(r)}\nbuffer_store_dword {v(vtmp+1)}, {v(vtmp)}, s[68:71], s67 offen offset:{4*i}\ns_nop 1")
        a(f"v_mov_b32 {v(vtmp+1)}, {s(r+1)}\nbuffer_store_dword {v(vtmp+1)}, {v(vtmp)}, s[68:71], s67 offen offset:{128+4*i}\ns_nop 1")

def swbar_setup(a, role):
    a(f"""
    s_lshl_b32 s6, {s(S_W)}, 2
    s_add_u32 s6, s6, {L_BAR + 16*role}
    v_mov_b32 {v(VBW)}, s6
    v_and_b32 {v(VBR)}, 3, {v(VL)}
    v_lshlrev_b32 {v(VBR)}, 2, {v(VBR)}
    v_add_u32 {v(VBR)}, {L_BAR + 16*role}, {v(VBR)}
    v_mov_b32 {v(VGEN)}, 0
    """)
def lds_wait(a, cmp_src, off=0, sleep=0, addr=VBR, prio=None):
    lp = a.label("lw"); dn = a.label("lwd")
    a(f"s_mov_b32 s7, {SPIN}\n{lp}:")
    a(f"ds_read_b32 {v(VBT)}, {v(addr)} offset:{off}\ns_sub_u32 s7, s7, 1\ns_waitcnt lgkmcnt(0)")
    a(f"v_cmp_gt_u32 vcc, {cmp_src}, {v(VBT)}\ns_cbranch_vccz {dn}")
    if sleep: a(f"s_sleep {sleep}")
    a(f"s_cmp_lg_u32 s7, 0\ns_cbranch_scc1 {lp}\n{dn}:")
class SwBar:
    def __init__(self, a): self.a = a; self.n = 0; self.prio = None
    def arrive(self, count=True):
        if count: self.n += 1
        self.a(f"v_add_u32 {v(VGEN)}, 1, {v(VGEN)}\nds_write_b32 {v(VBW)}, {v(VGEN)}")
    def __call__(self, sleep=0, count=True):
        a = self.a
        if self.prio is not None: a("s_setprio 3")
        self.arrive(count)
        lds_wait(a, v(VGEN), sleep=sleep)
        if self.prio is not None: a(f"s_setprio {self.prio}")

def nonce_load(a, vt):
    a(f"v_mov_b32 {v(vt)}, 0\nbuffer_load_dword {v(vt+1)}, {v(vt)}, {s(SD,4)}, 0 offen sc1")
def nonce_finish(a, vt):
    lp = a.label("nonce"); dn = a.label("nonced")
    a(f"""
    s_mov_b32 s7, {SPIN}
    {lp}:
    v_readfirstlane_b32 {s(S_NONCE)}, {v(vt+1)}
    s_sub_u32 s7, s7, 1
    s_cmp_lg_u32 {s(S_NONCE)}, 0
    s_cbranch_scc1 {dn}
    buffer_load_dword {v(vt+1)}, {v(vt)}, {s(SD,4)}, 0 offen sc1
    s_cmp_lg_u32 s7, 0
    s_waitcnt vmcnt(0)
    s_cbranch_scc1 {lp}
    {dn}:
    """)
def make_nonce(a, vt, lab_skip):
    a(f"""
    v_mov_b32 {v(vt)}, {FL_EPOCH}
    buffer_load_dword {v(vt+1)}, {v(vt)}, {s(SW,4)}, 0 offen sc1
    s_mov_b32 s6, 0x9e3779b1
    s_waitcnt vmcnt(0)
    v_mul_lo_u32 {v(vt+1)}, {v(vt+1)}, s6
    v_add_u32 {v(vt+1)}, 0x7f4a7c15, {v(vt+1)}
    v_max_u32 {v(vt+1)}, 1, {v(vt+1)}
    v_mov_b32 {v(vt+2)}, 0
    s_cmp_lg_u32 {s(S_W)}, 0
    s_cbranch_scc1 {lab_skip}
    s_mov_b64 exec, 1
    buffer_store_dword {v(vt+1)}, {v(vt+2)}, {s(SD,4)}, 0 offen sc1
    buffer_store_dword {v(vt+1)}, {v(vt)}, {s(SW,4)}, 0 offen sc1
    s_mov_b64 exec, -1
    """)
def poll(a, vaddr, vtmp, sleep=0):
    lp = a.label("poll"); dn = a.label("polld")
    a(f"""
    s_mov_b32 s7, {SPIN}
    {lp}:
    buffer_load_dword {v(vtmp)}, {v(vaddr)}, {s(SW,4)}, 0 offen sc1
    s_sub_u32 s7, s7, 1
    s_waitcnt vmcnt(0)
    v_cmp_ne_u32 vcc, {s(S_NONCE)}, {v(vtmp)}
    s_cbranch_vccz {dn}
    """)
    if sleep: a(f"s_sleep {sleep}")
    a(f"s_cmp_lg_u32 s7, 0\ns_cbranch_scc1 {lp}\n{dn}:")
def set_flag(a, s_off, vt, only_wave=None):
    sk = a.label("nof")
    if only_wave is not None: a(f"s_cmp_lg_u32 {s(S_W)}, {only_wave}\ns_cbranch_scc1 {sk}")
    a(f"""
    v_mov_b32 {v(vt)}, {s(S_NONCE)}
    v_and_b32 {v(vt+1)}, {FSTR//4-1}, {v(VL)}
    v_lshlrev_b32 {v(vt+1)}, 2, {v(vt+1)}
    buffer_store_dword {v(vt)}, {v(vt+1)}, {s(SW,4)}, {s(s_off)} offen sc1
    """)
    if only_wave is not None: a(f"{sk}:")
```

```python
from fcommon import *
S_TC, S_CG, S_I0, S_I1 = 38, 39, 42, 43

class Loader:
    def __init__(self, a, base, vb, t):
        self.a = a
        self.vx = base; self.vw = base + 4; self.vb = vb; self.t = t
        self.SX, self.SB = 52, 56
    def ld_valu(self):
        a = self.a; t = self.t; vx = self.vx; vw = self.vw
        a(f"""
        v_lshrrev_b32 {v(t)}, 3, {v(VL)}
        v_mul_u32_u24 {v(t)}, 1280, {v(t)}
        v_lshrrev_b32 {v(t+1)}, 4, {v(VL)}
        v_and_b32 {v(t+2)}, 7, {v(VL)}
        v_xor_b32 {v(t+2)}, {v(t+2)}, {v(t+1)}
        v_lshl_add_u32 {v(t+3)}, {v(t+2)}, 4, {v(t)}
        s_lshl_b32 s60, {s(S_I0)}, 2
        s_add_u32 s60, s60, {s(S_W)}
        s_mul_i32 s60, s60, {32*1280}
        v_add_u32 {v(vx)}, s60, {v(t+3)}
        v_xor_b32 {v(vx+1)}, 64, {v(vx)}
        v_add_u32 {v(vx+2)}, {2*(8*1280-1024)}, {v(vx)}
        v_add_u32 {v(vx+3)}, {3*(8*1280-1024)}, {v(vx+1)}
        v_add_u32 {v(vx+1)}, {1*(8*1280-1024)}, {v(vx+1)}
        v_mul_u32_u24 {v(t)}, 3840, {v(t+1)}
        v_lshlrev_b32 {v(t+1)}, 1, {v(t+1)}
        v_and_b32 {v(t+2)}, 15, {v(VL)}
        v_xor_b32 {v(t+2)}, {v(t+2)}, {v(t+1)}
        v_lshl_add_u32 {v(t+3)}, {v(t+2)}, 4, {v(t)}
        s_mul_i32 s60, {s(S_W)}, {16*3840}
        s_lshl_b32 s61, {s(S_I1)}, 8
        s_add_u32 s60, s60, s61
        v_add_u32 {v(vw)}, s60, {v(t+3)}
        v_xor_b32 {v(vw+2)}, 0x80, {v(vw)}
        v_add_u32 {v(vw+1)}, {1*(4*3840-1024)}, {v(vw)}
        v_add_u32 {v(vw+3)}, {3*(4*3840-1024)}, {v(vw+2)}
        v_add_u32 {v(vw+2)}, {2*(4*3840-1024)}, {v(vw+2)}
        s_and_b32 s62, {s(S_I0)}, 3
        s_mul_i32 s62, s62, 3
        s_add_u32 s62, s62, {s(S_I1)}
        s_mul_i32 s60, s62, 205
        s_lshr_b32 s60, s60, 11
        s_mul_i32 s60, s60, 10
        s_sub_u32 s62, s62, s60
        s_lshl_b32 s63, {s(S_W)}, 12
        """)
        if opt("norot"): a("s_mov_b32 s62, 0")
        if opt("rot") == 2: a(f"s_add_u32 s62, {s(S_I0)}, {s(S_I1)}\ns_and_b32 s62, s62, 1\ns_mul_i32 s62, s62, 5")
        if opt("rot") == 4: a(f"s_add_u32 s62, {s(S_I0)}, {s(S_I1)}\ns_and_b32 s62, s62, 3\ns_mul_i32 s62, s62, 5\ns_lshr_b32 s62, s62, 1")
        if opt("rot") == 5: a(f"s_add_u32 s62, {s(S_I0)}, {s(S_I1)}\ns_and_b32 s62, s62, 3")
    def ld_srd(self):
        a = self.a
        a.srd(self.SX, P_AX, 2048 * 1280); a.srd(self.SB, P_WQKV, 640 * 3840)
        a("s_mov_b32 s16, s62\ns_mov_b32 s17, s63")
    def half(self, st, h):
        a = self.a; base = L_RING + (st % NRING) * 32768; vb = self.vb
        if st < 10 and h == 0:
            a(f"s_add_u32 m0, s17, {base}\ns_lshl_b32 s6, s16, 7")
            for i in range(4): a(f"buffer_load_dwordx4 {v(self.vx+i)}, {s(self.SX,4)}, s6 offen offset:{1024*i} lds")
            return 4
        if st < 10:
            a(f"s_add_u32 m0, s17, {base+16384}\ns_mul_i32 s6, s16, {64*3840}")
            for i in range(4): a(f"buffer_load_dwordx4 {v(self.vw+i)}, {s(self.SB,4)}, s6 offen offset:{1024*i} lds")
            a("s_add_u32 s16, s16, 1\ns_cmp_eq_u32 s16, 10\ns_cselect_b32 s16, 0, s16")
            return 4
        if h == 0:
            a(f"s_add_u32 m0, s41, {base}\ns_lshl_b32 s6, s40, 7")
            for g in range(4): a(f"buffer_load_dwordx4 {v(vb+g)}, {s(self.SB,4)}, s6 offen offset:{1024*g} lds")
            return 4
        a(f"s_add_u32 m0, s41, {base+4096}\ns_lshl_b32 s6, s40, 7")
        a(f"buffer_load_dwordx4 {v(vb+4)}, {s(self.SB,4)}, s6 offen lds")
        a(f"s_add_u32 m0, s41, {base+5120}\ns_add_u32 s40, s40, 1")
        a(f"buffer_load_dwordx4 {v(vb+5)}, {s(self.SX,4)}, s6 offen lds")
        a(f"buffer_load_dwordx4 {v(vb+6)}, {s(self.SX,4)}, s6 offen offset:1024 lds")
        a("s_cmp_eq_u32 s40, 10\ns_cselect_b32 s40, 0, s40")
        return 3
    def b1_setup(self):
        a = self.a; t = self.t; vb = self.vb
        a(f"""
        s_and_b32 s60, {s(S_W)}, 1
        s_lshr_b32 s61, {s(S_W)}, 1
        v_lshrrev_b32 {v(t)}, 3, {v(VL)}
        v_lshrrev_b32 {v(t+1)}, 4, {v(VL)}
        v_and_b32 {v(t+2)}, 7, {v(VL)}
        v_xor_b32 {v(t+2)}, {v(t+2)}, {v(t+1)}
        v_lshlrev_b32 {v(t+2)}, 4, {v(t+2)}
        s_lshl_b32 s6, s61, 6
        v_xor_b32 {v(t+3)}, s6, {v(t+2)}
        s_lshl_b32 s6, s61, 3
        v_add_u32 {v(t+8)}, s6, {v(t)}
        s_mul_i32 s6, {s(S_CG)}, {80*1280}
        v_add_u32 {v(t+3)}, s6, {v(t+3)}
        v_mul_u32_u24 {v(t+5)}, {4*1280}, {v(t+8)}
        v_add_u32 {v(vb)}, {v(t+5)}, {v(t+3)}
        v_add_u32 {v(vb+1)}, {1*(1280-1024)}, {v(vb)}
        v_add_u32 {v(vb+2)}, {2*(1280-1024)}, {v(vb)}
        v_add_u32 {v(vb+3)}, {3*(1280-1024)}, {v(vb)}
        v_mul_u32_u24 {v(t+5)}, 1280, {v(t+8)}
        v_add_u32 {v(t+5)}, {64*1280}, {v(t+5)}
        v_add_u32 {v(vb+4)}, {v(t+5)}, {v(t+3)}
        s_lshl_b32 s6, {s(S_TC)}, 2
        s_add_u32 s6, s6, {s(S_W)}
        s_mul_i32 s6, s6, {16*1280}
        v_mul_u32_u24 {v(t+5)}, 1280, {v(t)}
        v_add3_u32 {v(vb+5)}, {v(t+5)}, {v(t+2)}, s6
        v_xor_b32 {v(vb+6)}, 64, {v(vb+5)}
        v_add_u32 {v(vb+6)}, {8*1280-1024}, {v(vb+6)}
        s_lshl_b32 s41, s60, 1
        s_add_u32 s41, s41, s61
        s_mul_i32 s41, s41, 7168
        s_and_b32 s40, {s(S_CG)}, 3
        s_mul_i32 s40, s40, 3
        s_and_b32 s6, {s(S_TC)}, 7
        s_add_u32 s40, s40, s6
        s_sub_u32 s6, s40, 10
        s_cmp_ge_u32 s40, 10
        s_cselect_b32 s40, s6, s40
        """)
    def b1_srd(self):
        a = self.a
        a.srd(self.SX, P_BX, 2048 * 1280)
        a(f"""
        s_bitcmp0_b32 {s(S_W)}, 0
        s_cselect_b32 {s(self.SB)}, {s(P_BRE)}, {s(P_BIM)}
        s_cselect_b32 {s(self.SB+1)}, {s(P_BRE+1)}, {s(P_BIM+1)}
        s_mov_b32 {s(self.SB+2)}, {640*1280}
        s_mov_b32 {s(self.SB+3)}, 0x00020000
        """)

NSL = opt('nsl', 4)
class A2:
    def __init__(self, a, bar):
        self.a = a; self.bar = bar
        R = Regs(8)
        self.vK0 = R.alloc("vK0"); self.vK1 = R.alloc("vK1"); self.vV0 = R.alloc("vV0"); self.vV1 = R.alloc("vV1")
        self.idx = R.alloc("idx")
        self.wo = R.alloc("wo", 1); R.next += 6
        self.Q = [R.alloc(f"Q{b}", 6) for b in range(4)]
        self.K = [R.alloc(f"K{i}", 6) for i in range(NSL)]
        self.V = [R.alloc(f"V{i}", 8) for i in range(NSL)]
        self.S = [R.alloc(f"S{b}", 16) for b in range(4)]
        self.O = [R.alloc(f"O{b}", 16) for b in range(4)]
        self.t = self.V[2]; self.M = self.V[1]
        self.free = R.next; self.pa = 253
        self.sK, self.sK0, self.sCnt, self.sTry = 52, 53, 54, 55
    def setup(self):
        a = self.a; t = self.t
        a(f"""
        s_and_b32 s56, {s(S_W)}, 1
        s_lshr_b32 s57, {s(S_W)}, 1
        s_mul_i32 {s(self.sK0)}, s57, {32*KVREC}
        s_mul_i32 s58, {s(S_I0)}, 1280
        s_mul_i32 s59, {s(S_I0)}, 320
        s_mul_i32 s63, {s(S_I0)}, 20
        s_lshr_b32 s60, s63, 6
        s_lshl_b32 s60, s60, 7
        s_add_u32 s60, s60, {WS_KV + 81920}
        v_and_b32 {v(t)}, 31, {v(VL)}
        v_lshrrev_b32 {v(t+1)}, 5, {v(VL)}
        v_and_b32 {v(t+2)}, 3, {v(VL)}
        v_bfe_u32 {v(t+3)}, {v(VL)}, 2, 1
        v_lshl_or_b32 {v(t+2)}, {v(t+3)}, 4, {v(t+2)}
        v_bfe_u32 {v(t+3)}, {v(VL)}, 3, 2
        v_lshl_or_b32 {v(t+2)}, {v(t+3)}, 2, {v(t+2)}
        s_add_u32 s61, s58, {WS_KV}
        v_lshl_add_u32 {v(t+2)}, {v(t+2)}, 3, s61
        v_lshl_add_u32 {v(self.vK0)}, {v(t+1)}, 8, {v(t+2)}
        v_add_u32 {v(t+2)}, 1024, {v(t+2)}
        v_mov_b32 {v(t+3)}, s60
        v_cmp_gt_u32 vcc, 32, {v(VL)}
        v_mul_u32_u24 {v(t+4)}, 10240, {v(t+1)}
        s_add_u32 s61, s59, {WS_KV + 40960}
        v_cndmask_b32 {v(self.vK1)}, {v(t+3)}, {v(t+2)}, vcc
        v_lshl_add_u32 {v(t+4)}, {v(t)}, 4, {v(t+4)}
        v_add_u32 {v(t+4)}, s61, {v(t+4)}
        v_cmp_gt_u32 vcc, 20, {v(t)}
        v_add_u32 {v(t+5)}, 20480, {v(t+4)}
        v_mov_b32 {v(self.idx)}, 0xdddddddd
        v_cndmask_b32 {v(self.vV0)}, {v(t+3)}, {v(t+4)}, vcc
        v_cndmask_b32 {v(self.vV1)}, {v(t+3)}, {v(t+5)}, vcc
        s_mov_b32 {s(self.sTry)}, 0
        """)
    def zero_q(self):
        for b in range(4):
            self.a(f"v_mov_b32 {v(self.Q[b]+4)}, 0\nv_mov_b32 {v(self.Q[b]+5)}, 0")
    def poll_addr(self):
        a = self.a; t = self.t
        q = a.label("pq"); go = a.label("pgo")
        a(f"""
        s_lshr_b32 s60, s63, 7
        s_add_u32 s61, s63, 19
        s_lshr_b32 s61, s61, 7
        s_sub_u32 s61, s61, s60
        v_bfe_u32 {v(t)}, {v(VL)}, 4, 1
        v_mul_u32_u24 {v(t)}, s61, {v(t)}
        v_add_u32 {v(t)}, s60, {v(t)}
        s_cmp_eq_u32 s57, 1
        s_cbranch_scc1 {q}
        v_lshrrev_b32 {v(t+1)}, 5, {v(VL)}
        v_mad_u32_u24 {v(t)}, {v(t+1)}, 5, {v(t)}
        v_add_u32 {v(t)}, 5, {v(t)}
        v_and_b32 {v(t+1)}, 15, {v(VL)}
        s_branch {go}
        {q}:
        v_and_b32 {v(t+1)}, 1, {v(VL)}
        s_lshl_b32 s60, {s(S_I1)}, 1
        v_add_u32 {v(t+1)}, s60, {v(t+1)}
        {go}:
        v_lshl_add_u32 {v(t)}, {v(t)}, 4, {v(t+1)}
        v_mul_u32_u24 {v(t)}, {FSTR}, {v(t)}
        v_add_u32 {v(self.pa)}, {FL_QKV}, {v(t)}
        s_lshl_b32 s59, {s(S_I1)}, 1
        s_add_u32 s59, s59, s56
        s_mul_i32 s59, s59, {4*QREC}
        s_add_u32 s59, s59, s58
        v_lshlrev_b32 {v(self.wo+6)}, 3, {v(VL)}
        """)
    def poll_first(self):
        a = self.a; sk = a.label("np1")
        a(f"""
        v_mov_b32 {v(self.pa+1)}, {s(S_NONCE)}
        s_cmp_eq_u32 s56, s57
        s_cbranch_scc1 {sk}
        buffer_load_dword {v(self.pa+1)}, {v(self.pa)}, {s(SW,4)}, 0 offen sc1
        {sk}:
        """)
    def poll_finish(self):
        a = self.a; slow = a.label("pslow"); dn = a.label("pdone")
        a(f"v_cmp_ne_u32 vcc, {s(S_NONCE)}, {v(self.pa+1)}\ns_cbranch_vccnz {slow}")
        self.bar.arrive()
        a(f"s_barrier\ns_branch {dn}\n{slow}:\ns_barrier")
        poll(a, self.pa, self.pa + 1)
        self.bar.arrive(count=False)
        a(f"{dn}:")
        lds_wait(a, v(VGEN))
    def q_loads(self, b):
        va = v(self.wo + 6); W = s(SW, 4)
        return [f"s_add_u32 s61, s59, {b*QREC}",
                f"buffer_load_dwordx2 {v(self.Q[b],2)}, {va}, {W}, s61 offen sc1",
                f"buffer_load_dwordx2 {v(self.Q[b]+2,2)}, {va}, {W}, s61 offen offset:512 sc1",
                "s_mov_b32 exec_hi, 0",
                f"buffer_load_dwordx2 {v(self.Q[b]+4,2)}, {va}, {W}, s61 offen offset:1024 sc1",
                "s_mov_b32 exec_hi, -1"]
    def kv_loads(self, slot, withv=True):
        K = self.K[slot]; V = self.V[slot]; W = s(SW, 4); so = s(self.sK)
        L = [f"buffer_load_dwordx2 {v(K,2)}, {v(self.vK0)}, {W}, {so} offen sc1",
             f"buffer_load_dwordx2 {v(K+2,2)}, {v(self.vK0)}, {W}, {so} offen offset:512 sc1",
             f"buffer_load_dwordx2 {v(K+4,2)}, {v(self.vK1)}, {W}, {so} offen sc1"]
        if withv:
            L += [f"buffer_load_dwordx4 {v(V,4)}, {v(self.vV0)}, {W}, {so} offen sc1",
                  f"buffer_load_dwordx4 {v(V+4,4)}, {v(self.vV1)}, {W}, {so} offen sc1"]
        L.append(f"s_add_u32 {so}, {so}, {KVREC}")
        return L
    def M8(self, b, slot):
        return f"v_mfma_f32_32x32x8_bf16 {v(self.S[b],16)}, {v(self.K[slot]+4,2)}, {v(self.Q[b]+4,2)}, 0"
    def M16(self, b, slot):
        return f"v_mfma_f32_32x32x16_bf16 {v(self.S[b],16)}, {v(self.K[slot],4)}, {v(self.Q[b],4)}, {v(self.S[b],16)}"
    def SM(self, b, slot, g):
        return f"v_smfmac_f32_32x32x32_bf16 {v(self.O[b],16)}, {v(self.V[slot]+4*g,4)}, {v(self.S[b]+8*g,8)}, {v(self.idx)}"
    def zero_o(self):
        for b in range(4):
            for r in range(16): self.a(f"v_mov_b32 {v(self.O[b]+r)}, 0")
    def zero_s(self):
        a = self.a
        for r in range(16): a(f"v_mov_b32 {v(self.S[3]+r)}, 0")
        for r in range(8): a(f"v_mov_b32 {v(self.V[NSL-1]+r)}, 0")
    def main(self):
        a = self.a; gate = 112 + opt("gate", 16)
        seq = []
        def issue(tag):
            kind, i = tag
            if kind == "q": L = self.q_loads(i); n = 3
            elif kind == "k": L = self.kv_loads(i % NSL)[:3]; n = 3
            else: L = self.kv_loads(i % NSL)[3:]; n = 2
            seq.extend([tag] * n)
            return L
        self.lastwait = None
        def need(*tags):
            k = max(len(seq) - 1 - seq[::-1].index(tg) for tg in tags)
            if self.lastwait is not None and k <= self.lastwait: return []
            self.lastwait = k
            return [f"s_waitcnt vmcnt({len(seq) - 1 - k})"]
        a(f"s_mov_b32 {s(self.sK)}, {s(self.sK0)}")
        for tg in (("k", 0), ("q", 0), ("q", 1), ("v", 0)):
            for x in issue(tg): a(x)
        for x in need(("k", 0), ("q", 0)): a(x)
        stamp(a, 5)
        a(self.M8(0, 0)); a(self.M16(0, 0))
        for x in issue(("q", 2)) + issue(("q", 3)): a(x)
        nxt = 1
        LOOP = opt("loop", 1) and NSL == 4
        real = a; loop = a.label("attn")
        for blk in range(128):
            st, b = divmod(blk, 4)
            if LOOP:
                if blk == 16: a(f"s_mov_b32 {s(self.sCnt)}, 6\n.p2align 3\n{loop}:")
                if blk == 32:
                    a(f"s_sub_u32 {s(self.sCnt)}, {s(self.sCnt)}, 1\ns_cmp_lg_u32 {s(self.sCnt)}, 0\ns_cbranch_scc1 {loop}")
                    a = lambda x: None
                if blk == 112: a = real
            e = [f"v_exp_f32 {v(self.S[b]+r)}, {v(self.S[b]+r)}" for r in range(16)]
            nb = (b + 1) % 4; nst = st if b < 3 else st + 1
            pb = (b - 1) % 4; pst = st if b > 0 else st - 1
            fin = blk == 127
            w = []
            if blk < 3: w = need(("q", blk + 1), ("v", 0)) if blk == 1 else need(("q", blk + 1))
            if b == 3 and not fin: w = need(("k", nst), ("v", nst))
            for x in w: a(x)
            extra = []
            if nxt < 32 and blk >= 4 * (nxt - NSL + 1) + (1 if nxt >= NSL - 1 else -100) and (b == 1 or nxt < NSL):
                extra = issue(("k", nxt)) + issue(("v", nxt)); nxt += 1
            if blk == gate: extra = extra + [f"ds_write_b32 {v(VBW)}, {v(self.idx)} offset:32"]
            body = ([] if fin else [self.M8(nb, nst % NSL)]) + e[0:4] + ([] if fin else [self.M16(nb, nst % NSL)]) + e[4:7] + [self.SM(pb, pst % NSL, 0)] + e[7:10] + [self.SM(pb, pst % NSL, 1)] + extra + e[10:16]
            for x in body: a(x)
        if gate >= 128: a(f"ds_write_b32 {v(VBW)}, {v(self.idx)} offset:32")
        a("s_nop 1")
        a(self.SM(3, 31 % NSL, 0)); a(self.SM(3, 31 % NSL, 1))
    def maxpass(self):
        a = self.a; t = self.t
        a(f"s_mov_b32 {s(self.sK)}, {s(self.sK0)}")
        for b in range(4): a(f"v_mov_b32 {v(self.M+b)}, 0xff800000")
        a(f"s_mov_b32 {s(self.sCnt)}, 32")
        loop = a.label("maxp")
        a(f"{loop}:")
        for x in self.kv_loads(0, withv=False): a(x)
        a("s_waitcnt vmcnt(0)")
        for b in range(4): a(self.M8(b, 0)); a(self.M16(b, 0))
        a("s_nop 11")
        for b in range(4):
            for r in range(0, 16, 2):
                a(f"v_max3_f32 {v(self.M+b)}, {v(self.S[b]+r)}, {v(self.S[b]+r+1)}, {v(self.M+b)}")
        a(f"s_sub_u32 {s(self.sCnt)}, {s(self.sCnt)}, 1\ns_cmp_lg_u32 {s(self.sCnt)}, 0\ns_cbranch_scc1 {loop}")
        a(f"""
        s_lshl_b32 s61, {s(S_W)}, 10
        s_add_u32 s61, s61, {L_ARED}
        v_lshl_add_u32 {v(t)}, {v(VL)}, 4, s61
        ds_write_b128 {v(t)}, {v(self.M,4)}
        s_waitcnt lgkmcnt(0)
        """)
        self.bar(count=False)
        S = self.S[0]
        a(f"""
        v_and_b32 {v(t)}, 31, {v(VL)}
        s_lshl_b32 s61, s56, 10
        s_add_u32 s61, s61, {L_ARED}
        v_lshl_add_u32 {v(t)}, {v(t)}, 4, s61
        ds_read_b128 {v(S,4)}, {v(t)}
        ds_read_b128 {v(S+4,4)}, {v(t)} offset:512
        ds_read_b128 {v(S+8,4)}, {v(t)} offset:2048
        ds_read_b128 {v(S+12,4)}, {v(t)} offset:2560
        s_waitcnt lgkmcnt(0)
        """)
        self.bar(count=False)
        a("s_mov_b32 exec_lo, 0")
        for b in range(4):
            m = self.M + b
            a(f"""
            v_max3_f32 {v(m)}, {v(S+b)}, {v(S+4+b)}, {v(S+8+b)}
            v_max_f32 {v(m)}, {v(m)}, {v(S+12+b)}
            v_sub_f32 {v(m)}, 0, {v(m)}
            v_and_b32 {v(t)}, 0xffff0000, {v(m)}
            v_sub_f32 {v(t+1)}, {v(m)}, {v(t)}
            v_and_b32 {v(t+2)}, 0xffff0000, {v(t+1)}
            v_sub_f32 {v(t+1)}, {v(t+1)}, {v(t+2)}
            v_lshrrev_b32 {v(t)}, 16, {v(t)}
            v_or_b32 {v(self.Q[b]+4)}, {v(t)}, {v(t+2)}
            v_lshrrev_b32 {v(self.Q[b]+5)}, 16, {v(t+1)}
            """)
        a("s_mov_b32 exec_lo, -1")
    def epi_setup(self):
        a = self.a; t = self.t; w = self.wo; WB = 6656
        a(f"""
        s_mul_i32 s61, {s(S_W)}, {WB}
        s_add_u32 s61, s61, {L_ARED}
        s_xor_b32 s62, {s(S_W)}, 2
        s_mul_i32 s62, s62, {WB}
        s_add_u32 s62, s62, {L_ARED}
        v_lshl_add_u32 {v(w)}, {v(VL)}, 4, s61
        v_lshl_add_u32 {v(w+1)}, {v(VL)}, 2, s61
        v_lshl_add_u32 {v(w+2)}, {v(VL)}, 4, s62
        v_lshl_add_u32 {v(w+3)}, {v(VL)}, 2, s62
        s_lshl_b32 s64, {s(S_I1)}, 1
        s_add_u32 s64, s64, s56
        s_lshl_b32 s64, s64, 1
        s_add_u32 s64, s64, s57
        s_mul_i32 s64, s64, {4*OREC}
        s_add_u32 s64, s64, {WS_O}
        s_add_u32 s65, s64, {2*OREC}
        v_bfe_u32 {v(t)}, {v(VL)}, 4, 1
        v_mul_u32_u24 {v(t)}, {OREC}, {v(t)}
        v_and_b32 {v(t+1)}, 15, {v(VL)}
        v_lshrrev_b32 {v(t+2)}, 5, {v(VL)}
        v_lshl_add_u32 {v(t+2)}, {v(t+2)}, 8, {v(t)}
        v_lshl_add_u32 {v(t+2)}, {v(t+1)}, 4, {v(t+2)}
        s_lshl_b32 s61, {s(S_I0)}, 9
        v_add_u32 {v(w+4)}, s61, {v(t+2)}
        v_lshl_add_u32 {v(t+3)}, {v(t+1)}, 3, {v(t)}
        s_lshl_b32 s61, {s(S_I0)}, 7
        s_add_u32 s61, s61, 16384
        v_add_u32 {v(w+5)}, s61, {v(t+3)}
        """)
    def reduce_store(self, lab_retry):
        a = self.a; t = self.t; w = self.wo
        l1 = a.label("red1"); l2 = a.label("red2")
        a(f"s_cmp_eq_u32 s57, 0\ns_cbranch_scc0 {l1}")
        for kh in range(2):
            if kh: a(f"{l1}:")
            for i in range(2):
                O = self.O[2 * (1 - kh) + i]
                for g in range(3):
                    a(f"ds_write_b128 {v(w)}, {v(O+4*g,4)} offset:{3328*i + 1024*g}")
                a(f"ds_write_b32 {v(w+1)}, {v(O+12)} offset:{3328*i + 3072}")
            self.bar(count=(kh == 0))
            for i in range(2):
                a(f"ds_read_b32 {v(self.S[i]+12)}, {v(w+3)} offset:{3328*i + 3072}")
                for g in range(3):
                    a(f"ds_read_b128 {v(self.S[i]+4*g,4)}, {v(w+2)} offset:{3328*i + 1024*g}")
            for i in range(2):
                O = self.O[2 * kh + i]
                a(f"s_waitcnt lgkmcnt({4*(1-i)})")
                a(f"v_add_f32 {v(self.S[i]+12)}, {v(self.S[i]+12)}, {v(O+12)}")
                a(f"v_rcp_f32 {v(self.S[i]+13)}, {v(self.S[i]+12)}")
                for r in range(12): a(f"v_add_f32 {v(self.S[i]+r)}, {v(self.S[i]+r)}, {v(O+r)}")
            if not kh: a(f"s_branch {l2}")
        a(f"{l2}:")
        for i in range(2):
            P = self.S[2] + 8 * i
            for r in range(12): a(f"v_mul_f32 {v(self.S[i]+r)}, {v(self.S[i]+r)}, {v(self.S[i]+13)}")
            for r in range(6): a(f"v_cvt_pk_bf16_f32 {v(P+r)}, {v(self.S[i]+2*r)}, {v(self.S[i]+2*r+1)}")
            a(f"buffer_store_dwordx4 {v(P,4)}, {v(w+4)}, {s(SW,4)}, {s(64+i)} offen sc1")
            a("s_mov_b32 exec_hi, 0")
            a(f"buffer_store_dwordx2 {v(P+4,2)}, {v(w+5)}, {s(SW,4)}, {s(64+i)} offen sc1")
            a("s_mov_b32 exec_hi, -1")
        a(f"""
        v_min_f32 {v(t+4)}, {v(self.S[0]+12)}, {v(self.S[1]+12)}
        v_max_f32 {v(t+5)}, {v(self.S[0]+12)}, {v(self.S[1]+12)}
        v_add_f32 {v(t+6)}, {v(self.S[0]+12)}, {v(self.S[1]+12)}
        """)
        for i in range(2):
            for r in range(12):
                a(f"v_fma_f32 {v(t+6)}, {v(self.S[i]+r)}, 0, {v(t+6)}")
        a(f"""
        v_cmp_nle_f32 vcc, 0x2f800000, {v(t+4)}
        s_mov_b64 s[62:63], vcc
        v_cmp_nge_f32 vcc, 0x5f800000, {v(t+5)}
        s_or_b64 s[62:63], s[62:63], vcc
        v_cmp_u_f32 vcc, {v(t+6)}, {v(t+6)}
        s_or_b64 s[62:63], s[62:63], vcc
        s_cselect_b32 s61, 1, 0
        v_mov_b32 {v(t+4)}, s61
        ds_write_b32 {v(VBW)}, {v(t+4)} offset:48
        s_waitcnt vmcnt(0)
        """)
        self.bar()
        a(f"""
        ds_read_b32 {v(t+4)}, {v(VBR)} offset:48
        s_waitcnt lgkmcnt(0)
        v_cmp_lt_u32 vcc, {s(self.sTry)}, {v(t+4)}
        s_cbranch_vccnz {lab_retry}
        """)

def wo_addr(a, vo, t, S):
    a.srd(S, P_WO, 640 * 1280)
    for i in range(5):
        a(f"""
        v_add_u32 {v(t)}, {64*i}, {v(VL)}
        v_mul_u32_u24 {v(t+1)}, 6554, {v(t)}
        v_lshrrev_b32 {v(t+1)}, 16, {v(t+1)}
        v_mul_u32_u24 {v(t+1)}, {1280-160}, {v(t+1)}
        v_lshl_add_u32 {v(vo+i)}, {v(VL)}, 4, {v(t+1)}
        """)
    a(f"v_add_u32 {v(vo+4)}, 4096, {v(vo+4)}")
def wo_load(a, vo, S, s_ct, groups):
    a(f"""
    s_mul_i32 s60, {s(s_ct)}, 160
    s_mul_i32 s61, {s(S_W)}, {32*1280}
    s_add_u32 s60, s60, s61
    s_add_u32 s60, s60, {groups[0]*128*1280}
    s_mul_i32 s61, {s(S_W)}, 5120
    """)
    for g in groups:
        a(f"s_add_u32 m0, s61, {L_WO + g*20480}\ns_nop 0")
        for i in range(4):
            a(f"buffer_load_dwordx4 {v(vo+i)}, {s(S,4)}, s60 offen offset:{1024*i} lds")
        a(f"s_add_u32 m0, s61, {L_WO + g*20480 + 4096}\ns_nop 0")
        a(f"buffer_load_dwordx4 {v(vo+4)}, {s(S,4)}, s60 offen lds")
        if g != groups[-1]: a(f"s_add_u32 s60, s60, {128*1280}")

class A3:
    def __init__(self, a):
        self.a = a
        R = Regs(16)
        self.aw = R.alloc("aw", 4); self.t = R.alloc("t", 4)
        self.Of = R.alloc("Of", 80, 4)
        self.W = [R.alloc(f"W{i}", 20, 4) for i in range(3)]
        self.acc = R.alloc("acc", 20, 4)
        self.SO = 52
    def setup(self):
        a = self.a; t = self.t; aw = self.aw
        a.srd(self.SO, P_OUT, 2048 * 5120)
        a(f"""
        v_bfe_u32 {v(t)}, {v(VL)}, 2, 2
        v_bfe_u32 {v(t+1)}, {v(VL)}, 4, 1
        v_lshl_add_u32 {v(t+1)}, {v(t+1)}, 2, {v(t)}
        v_lshrrev_b32 {v(t+2)}, 5, {v(VL)}
        v_mad_u32_u24 {v(t+1)}, {v(t+2)}, 20, {v(t+1)}
        v_mul_u32_u24 {v(t+1)}, 160, {v(t+1)}
        v_and_b32 {v(t+3)}, 3, {v(VL)}
        v_lshlrev_b32 {v(t+3)}, 3, {v(t+3)}
        v_add_u32 {v(t+3)}, {L_WO}, {v(t+3)}
        v_add_u32 {v(aw)}, {v(t+1)}, {v(t+3)}
        v_add_u32 {v(aw+1)}, 51200, {v(aw)}
        v_lshrrev_b32 {v(t+2)}, 4, {v(VL)}
        v_mad_u32_u24 {v(t+1)}, {v(t+2)}, 20, {v(t)}
        v_add_u32 {v(t+1)}, 16, {v(t+1)}
        v_mul_u32_u24 {v(t+1)}, 160, {v(t+1)}
        v_add_u32 {v(aw+2)}, {v(t+1)}, {v(t+3)}
        v_add_u32 {v(aw+3)}, 51200, {v(aw+2)}
        s_lshl_b32 s56, {s(S_I0)}, 2
        s_add_u32 s56, s56, {s(S_W)}
        s_mul_i32 s57, s56, {OREC}
        s_add_u32 s57, s57, {WS_O}
        s_mul_i32 s58, s56, {16*5120}
        s_mul_i32 s59, {s(S_I1)}, 320
        s_add_u32 s58, s58, s59
        v_lshlrev_b32 {v(t)}, 4, {v(VL)}
        v_lshlrev_b32 {v(t+1)}, 3, {v(VL)}
        v_and_b32 {v(t+3)}, 15, {v(VL)}
        v_mul_u32_u24 {v(t+3)}, 5120, {v(t+3)}
        v_lshl_add_u32 {v(t+2)}, {v(t+2)}, 4, {v(t+3)}
        """)
    def poll_o(self):
        a = self.a; sk = a.label("nopo")
        a(f"""
        s_cmp_lg_u32 {s(S_W)}, 1
        s_cbranch_scc1 {sk}
        s_lshr_b32 s60, {s(S_I0)}, 2
        s_mul_i32 s60, s60, {32*FSTR}
        s_add_u32 s60, s60, {FL_O}
        v_and_b32 v6, 31, {v(VL)}
        v_mul_u32_u24 v6, {FSTR}, v6
        v_add_u32 v6, s60, v6
        """)
        poll(a, 6, 7)
        a(f"{sk}:\ns_waitcnt vmcnt(0)")
    def load_o(self):
        a = self.a; t = self.t
        for st in range(16):
            if st and st % 4 == 0: a("s_add_u32 s57, s57, 4096")
            a(f"buffer_load_dwordx4 {v(self.Of+4*st,4)}, {v(t)}, {s(SW,4)}, s57 offen offset:{1024*(st%4)} sc1")
        a("s_add_u32 s57, s57, 4096")
        for st in range(4):
            for j in range(2):
                a(f"buffer_load_dwordx2 {v(self.Of+64+4*st+2*j,2)}, {v(t+1)}, {s(SW,4)}, s57 offen offset:{1024*st+512*j} sc1")
    def wreads(self, st):
        W = self.W[st % 3]; out = []
        for i in range(5):
            for j in range(2):
                if st < 16: off = st * 6400 + j * 1280 + i * 32; r = self.aw
                else: off = (st - 16) * 25600 + j * 12800 + i * 32; r = self.aw + 2
                if off >= 51200: off -= 51200; r += 1
                out.append(f"ds_read_b64_tr_b16 {v(W+4*i+2*j,2)}, {v(r)} offset:{off}")
        return out
    def pre(self):
        for st in range(2):
            for x in self.wreads(st): self.a(x)
    def compute(self):
        a = self.a
        for st in range(20):
            nv = (24 - (st + 1)) if st < 16 else (24 - (16 + 2 * (st - 15)))
            a(f"s_waitcnt vmcnt({nv}) lgkmcnt({10 if st < 19 else 0})")
            rd = self.wreads(st + 2) if st < 18 else []
            W = self.W[st % 3]
            for i in range(5):
                d = self.acc + 4 * i
                a(f"v_mfma_f32_16x16x32_bf16 {v(d,4)}, {v(W+4*i,4)}, {v(self.Of+4*st,4)}, {'0' if st == 0 else v(d,4)}")
                for x in rd[2*i:2*i+2]: a(x)
        a("s_nop 7")
        for i in range(5):
            a(f"buffer_store_dwordx4 {v(self.acc+4*i,4)}, {v(self.t+2)}, {s(self.SO,4)}, s58 offen offset:{64*i} {OPT.get('oa','').replace('+',' ')}")
```

```python
from asmlib import *
import math, struct, os
P_AX, P_WQKV, P_WO, P_BX, P_LRE, P_LIM, P_BRE, P_BIM = 8, 10, 12, 14, 16, 18, 20, 22
P_CRE, P_CIM, P_LDT, P_DSK, P_OUT, P_DBG, P_WS = 24, 26, 28, 30, 32, 34, 36
S_WAVE, S_W, S_NONCE = 3, 4, 5
SW, SD = 44, 96
VL, VBW, VBR, VGEN, VBT = 1, 2, 3, 4, 5
QREC = 40960
KVREC = 83200
WS_Q = 0
WS_KV = WS_Q + 64 * QREC
WS_O = WS_KV + 64 * KVREC
OREC = 20480
WS_H = WS_O + 128 * OREC
HREC = 40960
WS_C = WS_H + 128 * HREC
WS_AGG = WS_C + 40 * HREC
WS_FLAG = WS_AGG + 32 * 8192
FSTR = int(os.environ.get('FSTR', '128'))
FL_EPOCH = WS_FLAG
FL_QKV = WS_FLAG + 4096
FL_AGG = FL_QKV + 256 * FSTR
FL_H = FL_AGG + 512 * FSTR
FL_O = FL_H + 256 * FSTR
WS_END = WS_FLAG + (1 << 20)
L_COEF, L_AG, L_CIN = 0, 640, 640 + 10240
L_BAR = 11520
L_RING = 12288
L_WO = 12288
L_ARED = L_WO + 81920
L_BRED = 121088
LDS_TOTAL = 162048
def f2u(x): return struct.unpack("<I", struct.pack("<f", x))[0]
QSCALE = f2u(math.log2(math.e) / math.sqrt(20.0))
LOG2E = f2u(math.log2(math.e)); INV2PI = f2u(1.0 / (2 * math.pi))
SPIN = 1 << int(os.environ.get('SPINLOG', '16'))
OPT = dict(x.split("=") if "=" in x else (x, "1") for x in os.environ.get("OPT", "").split(",") if x)
def opt(k, d=0): return int(OPT.get(k, d))

STAMPS = int(os.environ.get("STAMPS", "0"))
ST_BASE = 72
def stamp(a, i, q=False):
    if not STAMPS: return
    if opt("qst") and i > 1 and not q: return
    r = ST_BASE + 2 * (i % 12)
    a(f"s_memrealtime s[70:71]\ns_memtime s[68:69]\ns_waitcnt lgkmcnt(0)\ns_mov_b32 {s(r)}, s70\ns_mov_b32 {s(r+1)}, s68")
def stamp_dump(a, idxs, vtmp=6):
    if not STAMPS: return
    if STAMPS == 3:
        sk = a.label("nod"); lp = a.label("enc"); r = ST_BASE + 2 * (opt('enc') % 12)
        a(f"""
        s_cmp_lg_u32 s2, {opt('dwg', 100)}
        s_cbranch_scc1 {sk}
        s_cmp_lg_u32 {s(S_WAVE)}, {opt('dwave', 0)}
        s_cbranch_scc1 {sk}
        s_sub_u32 s67, {s(r)}, {s(ST_BASE)}
        s_lshl_b32 s67, s67, 4
        s_add_u32 s67, s67, 10000
        {lp}:
        s_memrealtime s[70:71]
        s_waitcnt lgkmcnt(0)
        s_sub_u32 s70, s70, {s(ST_BASE)}
        s_cmp_lt_u32 s70, s67
        s_cbranch_scc1 {lp}
        {sk}:
        """)
        return
    if STAMPS == 2:
        sk = a.label("nod")
        a(f"s_mov_b64 exec, -1\ns_cmp_lg_u32 s2, {opt('dwg', 100)}\ns_cbranch_scc1 {sk}\ns_cmp_lg_u32 {s(S_WAVE)}, {opt('dwave', 0)}\ns_cbranch_scc1 {sk}\nv_mov_b32 {v(vtmp)}, 0")
        for i in idxs:
            if i == 0: continue
            r = ST_BASE + 2 * (i % 12)
            a(f"s_sub_u32 s67, {s(r)}, {s(ST_BASE)}\nv_mov_b32 {v(vtmp+1)}, s67\nbuffer_store_dword {v(vtmp+1)}, {v(vtmp)}, {s(SD,4)}, 0 offen offset:{4*i}\ns_nop 1")
        a(f"{sk}:")
        return
    a(f"""
    s_mov_b64 exec, -1
    s_mov_b32 s68, s{P_WS}
    s_mov_b32 s69, s{P_WS+1}
    s_mov_b32 s70, {WS_END + (1<<20)}
    s_mov_b32 s71, 0x00020000
    s_lshl_b32 s67, s2, 3
    s_add_u32 s67, s67, {s(S_WAVE)}
    s_lshl_b32 s67, s67, 8
    s_add_u32 s67, s67, {WS_END}
    v_mov_b32 {v(vtmp)}, 0
    """)
    for i in idxs:
        r = ST_BASE + 2 * (i % 12)
        a(f"v_mov_b32 {v(vtmp+1)}, {s(r)}\nbuffer_store_dword {v(vtmp+1)}, {v(vtmp)}, s[68:71], s67 offen offset:{4*i}\ns_nop 1")
        a(f"v_mov_b32 {v(vtmp+1)}, {s(r+1)}\nbuffer_store_dword {v(vtmp+1)}, {v(vtmp)}, s[68:71], s67 offen offset:{128+4*i}\ns_nop 1")

def swbar_setup(a, role):
    a(f"""
    s_lshl_b32 s6, {s(S_W)}, 2
    s_add_u32 s6, s6, {L_BAR + 16*role}
    v_mov_b32 {v(VBW)}, s6
    v_and_b32 {v(VBR)}, 3, {v(VL)}
    v_lshlrev_b32 {v(VBR)}, 2, {v(VBR)}
    v_add_u32 {v(VBR)}, {L_BAR + 16*role}, {v(VBR)}
    v_mov_b32 {v(VGEN)}, 0
    """)
def lds_wait(a, cmp_src, off=0, sleep=0, addr=VBR, prio=None):
    lp = a.label("lw"); dn = a.label("lwd")
    a(f"s_mov_b32 s7, {SPIN}\n{lp}:")
    a(f"ds_read_b32 {v(VBT)}, {v(addr)} offset:{off}\ns_sub_u32 s7, s7, 1\ns_waitcnt lgkmcnt(0)")
    a(f"v_cmp_gt_u32 vcc, {cmp_src}, {v(VBT)}\ns_cbranch_vccz {dn}")
    if sleep: a(f"s_sleep {sleep}")
    a(f"s_cmp_lg_u32 s7, 0\ns_cbranch_scc1 {lp}\n{dn}:")
class SwBar:
    def __init__(self, a): self.a = a; self.n = 0; self.prio = None
    def arrive(self, count=True):
        if count: self.n += 1
        self.a(f"v_add_u32 {v(VGEN)}, 1, {v(VGEN)}\nds_write_b32 {v(VBW)}, {v(VGEN)}")
    def __call__(self, sleep=0, count=True):
        a = self.a
        if self.prio is not None: a("s_setprio 3")
        self.arrive(count)
        lds_wait(a, v(VGEN), sleep=sleep)
        if self.prio is not None: a(f"s_setprio {self.prio}")

def nonce_load(a, vt):
    a(f"v_mov_b32 {v(vt)}, 0\nbuffer_load_dword {v(vt+1)}, {v(vt)}, {s(SD,4)}, 0 offen sc1")
def nonce_finish(a, vt):
    lp = a.label("nonce"); dn = a.label("nonced")
    a(f"""
    s_mov_b32 s7, {SPIN}
    {lp}:
    v_readfirstlane_b32 {s(S_NONCE)}, {v(vt+1)}
    s_sub_u32 s7, s7, 1
    s_cmp_lg_u32 {s(S_NONCE)}, 0
    s_cbranch_scc1 {dn}
    buffer_load_dword {v(vt+1)}, {v(vt)}, {s(SD,4)}, 0 offen sc1
    s_cmp_lg_u32 s7, 0
    s_waitcnt vmcnt(0)
    s_cbranch_scc1 {lp}
    {dn}:
    """)
def make_nonce(a, vt):
    a(f"""
    v_mov_b32 {v(vt)}, {FL_EPOCH}
    buffer_load_dword {v(vt+1)}, {v(vt)}, {s(SW,4)}, 0 offen sc1
    s_mov_b32 s6, 0x9e3779b1
    s_waitcnt vmcnt(0)
    v_mul_lo_u32 {v(vt+1)}, {v(vt+1)}, s6
    v_add_u32 {v(vt+1)}, 0x7f4a7c15, {v(vt+1)}
    v_max_u32 {v(vt+1)}, 1, {v(vt+1)}
    v_mov_b32 {v(vt+2)}, 0
    s_mov_b64 exec, 1
    buffer_store_dword {v(vt+1)}, {v(vt+2)}, {s(SD,4)}, 0 offen sc1
    buffer_store_dword {v(vt+1)}, {v(vt)}, {s(SW,4)}, 0 offen sc1
    s_mov_b64 exec, -1
    """)
def poll(a, vaddr, vtmp, sleep=0):
    lp = a.label("poll"); dn = a.label("polld")
    a(f"""
    s_mov_b32 s7, {SPIN}
    {lp}:
    buffer_load_dword {v(vtmp)}, {v(vaddr)}, {s(SW,4)}, 0 offen sc1
    s_sub_u32 s7, s7, 1
    s_waitcnt vmcnt(0)
    v_cmp_ne_u32 vcc, {s(S_NONCE)}, {v(vtmp)}
    s_cbranch_vccz {dn}
    """)
    if sleep: a(f"s_sleep {sleep}")
    a(f"s_cmp_lg_u32 s7, 0\ns_cbranch_scc1 {lp}\n{dn}:")
def set_flag(a, s_off, vt, only_wave=None):
    sk = a.label("nof")
    if only_wave is not None: a(f"s_cmp_lg_u32 {s(S_W)}, {only_wave}\ns_cbranch_scc1 {sk}")
    a(f"""
    v_mov_b32 {v(vt)}, {s(S_NONCE)}
    v_and_b32 {v(vt+1)}, {FSTR//4-1}, {v(VL)}
    v_lshlrev_b32 {v(vt+1)}, 2, {v(vt+1)}
    buffer_store_dword {v(vt)}, {v(vt+1)}, {s(SW,4)}, {s(s_off)} offen sc1
    """)
    if only_wave is not None: a(f"{sk}:")
```

```python
from fcommon import *
S_TC, S_CG, S_I0, S_I1 = 38, 39, 42, 43

class Loader:
    def __init__(self, a, base):
        self.a = a
        self.vx = base; self.vw = base + 4; self.vb = base + 8; self.t = base + 16
        self.SX, self.SB = 48, 24
    def ld_valu(self):
        a = self.a; t = self.t; vx = self.vx; vw = self.vw
        a(f"""
        v_lshrrev_b32 {v(t)}, 3, {v(VL)}
        v_mul_u32_u24 {v(t)}, 1280, {v(t)}
        v_lshrrev_b32 {v(t+1)}, 4, {v(VL)}
        v_and_b32 {v(t+2)}, 7, {v(VL)}
        v_xor_b32 {v(t+2)}, {v(t+2)}, {v(t+1)}
        v_lshl_add_u32 {v(t+3)}, {v(t+2)}, 4, {v(t)}
        s_lshl_b32 s60, {s(S_I0)}, 2
        s_add_u32 s60, s60, {s(S_W)}
        s_mul_i32 s60, s60, {32*1280}
        v_add_u32 {v(vx)}, s60, {v(t+3)}
        v_xor_b32 {v(vx+1)}, 64, {v(vx)}
        v_add_u32 {v(vx+2)}, {2*(8*1280-1024)}, {v(vx)}
        v_add_u32 {v(vx+3)}, {3*(8*1280-1024)}, {v(vx+1)}
        v_add_u32 {v(vx+1)}, {1*(8*1280-1024)}, {v(vx+1)}
        v_mul_u32_u24 {v(t)}, 3840, {v(t+1)}
        v_lshlrev_b32 {v(t+1)}, 1, {v(t+1)}
        v_and_b32 {v(t+2)}, 15, {v(VL)}
        v_xor_b32 {v(t+2)}, {v(t+2)}, {v(t+1)}
        v_lshl_add_u32 {v(t+3)}, {v(t+2)}, 4, {v(t)}
        s_mul_i32 s60, {s(S_W)}, {16*3840}
        s_lshl_b32 s61, {s(S_I1)}, 8
        s_add_u32 s60, s60, s61
        v_add_u32 {v(vw)}, s60, {v(t+3)}
        v_xor_b32 {v(vw+2)}, 0x80, {v(vw)}
        v_add_u32 {v(vw+1)}, {1*(4*3840-1024)}, {v(vw)}
        v_add_u32 {v(vw+3)}, {3*(4*3840-1024)}, {v(vw+2)}
        v_add_u32 {v(vw+2)}, {2*(4*3840-1024)}, {v(vw+2)}
        s_and_b32 s62, {s(S_I0)}, 3
        s_mul_i32 s62, s62, 3
        s_add_u32 s62, s62, {s(S_I1)}
        s_mul_i32 s60, s62, 205
        s_lshr_b32 s60, s60, 11
        s_mul_i32 s60, s60, 10
        s_sub_u32 s62, s62, s60
        s_lshl_b32 s63, {s(S_W)}, 12
        """)
        if opt("norot"): a("s_mov_b32 s62, 0")
        if opt("rot") == 2: a(f"s_add_u32 s62, {s(S_I0)}, {s(S_I1)}\ns_and_b32 s62, s62, 1\ns_mul_i32 s62, s62, 5")
        if opt("rot") == 4: a(f"s_add_u32 s62, {s(S_I0)}, {s(S_I1)}\ns_and_b32 s62, s62, 3\ns_mul_i32 s62, s62, 5\ns_lshr_b32 s62, s62, 1")
        if opt("rot") == 5: a(f"s_add_u32 s62, {s(S_I0)}, {s(S_I1)}\ns_and_b32 s62, s62, 3")
    def ld_srd(self):
        a = self.a
        a.srd(self.SX, P_AX, 2048 * 1280); a.srd(self.SB, P_WQKV, 640 * 3840)
        a("s_mov_b32 s16, s62\ns_mov_b32 s17, s63")
    def half(self, st, h):
        a = self.a; base = L_RING + (st % NRING) * 32768; vb = self.vb
        if st < 10 and h == 0:
            a(f"s_add_u32 m0, s17, {base}\ns_lshl_b32 s6, s16, 7")
            for i in range(4): a(f"buffer_load_dwordx4 {v(self.vx+i)}, {s(self.SX,4)}, s6 offen offset:{1024*i} lds")
            return 4
        if st < 10:
            a(f"s_add_u32 m0, s17, {base+16384}\ns_mul_i32 s6, s16, {64*3840}")
            for i in range(4): a(f"buffer_load_dwordx4 {v(self.vw+i)}, {s(self.SB,4)}, s6 offen offset:{1024*i} lds")
            a("s_add_u32 s16, s16, 1\ns_cmp_eq_u32 s16, 10\ns_cselect_b32 s16, 0, s16")
            return 4
        if h == 0:
            a(f"s_add_u32 m0, s41, {base}\ns_lshl_b32 s6, s40, 7")
            for g in range(4): a(f"buffer_load_dwordx4 {v(vb+g)}, {s(self.SB,4)}, s6 offen offset:{1024*g} lds")
            return 4
        a(f"s_add_u32 m0, s41, {base+4096}\ns_lshl_b32 s6, s40, 7")
        a(f"buffer_load_dwordx4 {v(vb+4)}, {s(self.SB,4)}, s6 offen lds")
        a(f"s_add_u32 m0, s41, {base+5120}\ns_add_u32 s40, s40, 1")
        a(f"buffer_load_dwordx4 {v(vb+5)}, {s(self.SX,4)}, s6 offen lds")
        a(f"buffer_load_dwordx4 {v(vb+6)}, {s(self.SX,4)}, s6 offen offset:1024 lds")
        a("s_cmp_eq_u32 s40, 10\ns_cselect_b32 s40, 0, s40")
        return 3
    def b1_setup(self):
        a = self.a; t = self.t; vb = self.vb
        a(f"""
        s_and_b32 s60, {s(S_W)}, 1
        s_lshr_b32 s61, {s(S_W)}, 1
        v_lshrrev_b32 {v(t)}, 3, {v(VL)}
        v_lshrrev_b32 {v(t+1)}, 4, {v(VL)}
        v_and_b32 {v(t+2)}, 7, {v(VL)}
        v_xor_b32 {v(t+2)}, {v(t+2)}, {v(t+1)}
        v_lshlrev_b32 {v(t+2)}, 4, {v(t+2)}
        s_lshl_b32 s6, s61, 6
        v_xor_b32 {v(t+3)}, s6, {v(t+2)}
        s_lshl_b32 s6, s61, 3
        v_add_u32 {v(t+8)}, s6, {v(t)}
        s_mul_i32 s6, {s(S_CG)}, {80*1280}
        v_add_u32 {v(t+3)}, s6, {v(t+3)}
        v_mul_u32_u24 {v(t+5)}, {4*1280}, {v(t+8)}
        v_add_u32 {v(vb)}, {v(t+5)}, {v(t+3)}
        v_add_u32 {v(vb+1)}, {1*(1280-1024)}, {v(vb)}
        v_add_u32 {v(vb+2)}, {2*(1280-1024)}, {v(vb)}
        v_add_u32 {v(vb+3)}, {3*(1280-1024)}, {v(vb)}
        v_mul_u32_u24 {v(t+5)}, 1280, {v(t+8)}
        v_add_u32 {v(t+5)}, {64*1280}, {v(t+5)}
        v_add_u32 {v(vb+4)}, {v(t+5)}, {v(t+3)}
        s_lshl_b32 s6, {s(S_TC)}, 2
        s_add_u32 s6, s6, {s(S_W)}
        s_mul_i32 s6, s6, {16*1280}
        v_mul_u32_u24 {v(t+5)}, 1280, {v(t)}
        v_add3_u32 {v(vb+5)}, {v(t+5)}, {v(t+2)}, s6
        v_xor_b32 {v(vb+6)}, 64, {v(vb+5)}
        v_add_u32 {v(vb+6)}, {8*1280-1024}, {v(vb+6)}
        s_lshl_b32 s41, s60, 1
        s_add_u32 s41, s41, s61
        s_mul_i32 s41, s41, 7168
        s_and_b32 s40, {s(S_CG)}, 3
        s_mul_i32 s40, s40, 3
        s_and_b32 s6, {s(S_TC)}, 7
        s_add_u32 s40, s40, s6
        s_sub_u32 s6, s40, 10
        s_cmp_ge_u32 s40, 10
        s_cselect_b32 s40, s6, s40
        """)
    def b1_srd(self):
        a = self.a
        a.srd(self.SX, P_BX, 2048 * 1280)
        a(f"""
        s_bitcmp0_b32 {s(S_W)}, 0
        s_cselect_b32 {s(self.SB)}, {s(P_BRE)}, {s(P_BIM)}
        s_cselect_b32 {s(self.SB+1)}, {s(P_BRE+1)}, {s(P_BIM+1)}
        s_mov_b32 {s(self.SB+2)}, {640*1280}
        """)

NSL = opt('nsl', 4)
class A2:
    def __init__(self, a, bar):
        self.a = a; self.bar = bar
        R = Regs(8)
        self.vK0 = R.alloc("vK0"); self.vK1 = R.alloc("vK1"); self.vV0 = R.alloc("vV0"); self.vV1 = R.alloc("vV1")
        self.idx = R.alloc("idx")
        self.wo = R.alloc("wo", 1); R.next += 6
        self.Q = [R.alloc(f"Q{b}", 6) for b in range(4)]
        self.K = [R.alloc(f"K{i}", 6) for i in range(NSL)]
        self.V = [R.alloc(f"V{i}", 8) for i in range(NSL)]
        self.S = [R.alloc(f"S{b}", 16) for b in range(4)]
        self.O = [R.alloc(f"O{b}", 16) for b in range(4)]
        self.t = self.V[2]; self.M = self.V[1]
        self.sK, self.sK0, self.sCnt, self.sTry = 52, 53, 54, 55
    def setup(self):
        a = self.a; t = self.t
        a(f"""
        s_and_b32 s56, {s(S_W)}, 1
        s_lshr_b32 s57, {s(S_W)}, 1
        s_mul_i32 {s(self.sK0)}, s57, {32*KVREC}
        s_mul_i32 s58, {s(S_I0)}, 1280
        s_mul_i32 s59, {s(S_I0)}, 320
        s_mul_i32 s63, {s(S_I0)}, 20
        s_lshr_b32 s60, s63, 6
        s_lshl_b32 s60, s60, 7
        s_add_u32 s60, s60, {WS_KV + 81920}
        v_and_b32 {v(t)}, 31, {v(VL)}
        v_lshrrev_b32 {v(t+1)}, 5, {v(VL)}
        v_and_b32 {v(t+2)}, 3, {v(VL)}
        v_bfe_u32 {v(t+3)}, {v(VL)}, 2, 1
        v_lshl_or_b32 {v(t+2)}, {v(t+3)}, 4, {v(t+2)}
        v_bfe_u32 {v(t+3)}, {v(VL)}, 3, 2
        v_lshl_or_b32 {v(t+2)}, {v(t+3)}, 2, {v(t+2)}
        s_add_u32 s61, s58, {WS_KV}
        v_lshl_add_u32 {v(t+2)}, {v(t+2)}, 3, s61
        v_lshl_add_u32 {v(self.vK0)}, {v(t+1)}, 8, {v(t+2)}
        v_add_u32 {v(t+2)}, 1024, {v(t+2)}
        v_mov_b32 {v(t+3)}, s60
        v_cmp_gt_u32 vcc, 32, {v(VL)}
        v_mul_u32_u24 {v(t+4)}, 10240, {v(t+1)}
        s_add_u32 s61, s59, {WS_KV + 40960}
        v_cndmask_b32 {v(self.vK1)}, {v(t+3)}, {v(t+2)}, vcc
        v_lshl_add_u32 {v(t+4)}, {v(t)}, 4, {v(t+4)}
        v_add_u32 {v(t+4)}, s61, {v(t+4)}
        v_cmp_gt_u32 vcc, 20, {v(t)}
        v_add_u32 {v(t+5)}, 20480, {v(t+4)}
        v_mov_b32 {v(self.idx)}, 0xdddddddd
        v_cndmask_b32 {v(self.vV0)}, {v(t+3)}, {v(t+4)}, vcc
        v_cndmask_b32 {v(self.vV1)}, {v(t+3)}, {v(t+5)}, vcc
        s_mov_b32 {s(self.sTry)}, 0
        """)
        for b in range(4):
            a(f"v_mov_b32 {v(self.Q[b]+4)}, 0\nv_mov_b32 {v(self.Q[b]+5)}, 0")
    def poll_addr(self):
        a = self.a; t = self.t
        q = a.label("pq"); go = a.label("pgo")
        a(f"""
        s_lshr_b32 s60, s63, 7
        s_add_u32 s61, s63, 19
        s_lshr_b32 s61, s61, 7
        s_sub_u32 s61, s61, s60
        v_bfe_u32 {v(t)}, {v(VL)}, 4, 1
        v_mul_u32_u24 {v(t)}, s61, {v(t)}
        v_add_u32 {v(t)}, s60, {v(t)}
        s_cmp_eq_u32 s57, 1
        s_cbranch_scc1 {q}
        v_lshrrev_b32 {v(t+1)}, 5, {v(VL)}
        v_mad_u32_u24 {v(t)}, {v(t+1)}, 5, {v(t)}
        v_add_u32 {v(t)}, 5, {v(t)}
        v_and_b32 {v(t+1)}, 15, {v(VL)}
        s_branch {go}
        {q}:
        v_and_b32 {v(t+1)}, 1, {v(VL)}
        s_lshl_b32 s60, {s(S_I1)}, 1
        v_add_u32 {v(t+1)}, s60, {v(t+1)}
        {go}:
        v_lshl_add_u32 {v(t)}, {v(t)}, 4, {v(t+1)}
        v_mul_u32_u24 {v(t)}, {FSTR}, {v(t)}
        v_add_u32 {v(self.M)}, {FL_QKV}, {v(t)}
        s_lshl_b32 s59, {s(S_I1)}, 1
        s_add_u32 s59, s59, s56
        s_mul_i32 s59, s59, {4*QREC}
        s_add_u32 s59, s59, s58
        v_lshlrev_b32 {v(self.wo+6)}, 3, {v(VL)}
        """)
    def poll_first(self):
        a = self.a; sk = a.label("np1")
        a(f"""
        v_mov_b32 {v(self.M+1)}, {s(S_NONCE)}
        s_cmp_eq_u32 s56, s57
        s_cbranch_scc1 {sk}
        buffer_load_dword {v(self.M+1)}, {v(self.M)}, {s(SW,4)}, 0 offen sc1
        {sk}:
        """)
    def poll_finish(self):
        a = self.a; slow = a.label("pslow"); dn = a.label("pdone")
        a(f"v_cmp_ne_u32 vcc, {s(S_NONCE)}, {v(self.M+1)}\ns_cbranch_vccnz {slow}")
        self.bar.arrive()
        a(f"s_barrier\ns_branch {dn}\n{slow}:\ns_barrier")
        poll(a, self.M, self.M + 1)
        self.bar.arrive(count=False)
        a(f"{dn}:")
        lds_wait(a, v(VGEN))
    def q_loads(self, b):
        va = v(self.wo + 6); W = s(SW, 4)
        return [f"s_add_u32 s61, s59, {b*QREC}",
                f"buffer_load_dwordx2 {v(self.Q[b],2)}, {va}, {W}, s61 offen sc1",
                f"buffer_load_dwordx2 {v(self.Q[b]+2,2)}, {va}, {W}, s61 offen offset:512 sc1",
                "s_mov_b32 exec_hi, 0",
                f"buffer_load_dwordx2 {v(self.Q[b]+4,2)}, {va}, {W}, s61 offen offset:1024 sc1",
                "s_mov_b32 exec_hi, -1"]
    def kv_loads(self, slot, withv=True):
        K = self.K[slot]; V = self.V[slot]; W = s(SW, 4); so = s(self.sK)
        L = [f"buffer_load_dwordx2 {v(K,2)}, {v(self.vK0)}, {W}, {so} offen sc1",
             f"buffer_load_dwordx2 {v(K+2,2)}, {v(self.vK0)}, {W}, {so} offen offset:512 sc1",
             f"buffer_load_dwordx2 {v(K+4,2)}, {v(self.vK1)}, {W}, {so} offen sc1"]
        if withv:
            L += [f"buffer_load_dwordx4 {v(V,4)}, {v(self.vV0)}, {W}, {so} offen sc1",
                  f"buffer_load_dwordx4 {v(V+4,4)}, {v(self.vV1)}, {W}, {so} offen sc1"]
        L.append(f"s_add_u32 {so}, {so}, {KVREC}")
        return L
    def M8(self, b, slot):
        return f"v_mfma_f32_32x32x8_bf16 {v(self.S[b],16)}, {v(self.K[slot]+4,2)}, {v(self.Q[b]+4,2)}, 0"
    def M16(self, b, slot):
        return f"v_mfma_f32_32x32x16_bf16 {v(self.S[b],16)}, {v(self.K[slot],4)}, {v(self.Q[b],4)}, {v(self.S[b],16)}"
    def SM(self, b, slot, g):
        return f"v_smfmac_f32_32x32x32_bf16 {v(self.O[b],16)}, {v(self.V[slot]+4*g,4)}, {v(self.S[b]+8*g,8)}, {v(self.idx)}"
    def zero(self):
        a = self.a
        for b in range(4):
            for r in range(16): a(f"v_mov_b32 {v(self.O[b]+r)}, 0")
        for r in range(16): a(f"v_mov_b32 {v(self.S[3]+r)}, 0")
        for r in range(8): a(f"v_mov_b32 {v(self.V[NSL-1]+r)}, 0")
    def main(self):
        a = self.a; gate = 112 + opt("gate", 16)
        seq = []
        def issue(tag):
            kind, i = tag
            if kind == "q": L = self.q_loads(i); n = 3
            elif kind == "k": L = self.kv_loads(i % NSL)[:3]; n = 3
            else: L = self.kv_loads(i % NSL)[3:]; n = 2
            seq.extend([tag] * n)
            return L
        self.lastwait = None
        def need(*tags):
            k = max(len(seq) - 1 - seq[::-1].index(tg) for tg in tags)
            if self.lastwait is not None and k <= self.lastwait: return []
            self.lastwait = k
            return [f"s_waitcnt vmcnt({len(seq) - 1 - k})"]
        a(f"s_mov_b32 {s(self.sK)}, {s(self.sK0)}")
        for tg in (("k", 0), ("q", 0), ("q", 1), ("v", 0)):
            for x in issue(tg): a(x)
        for x in need(("k", 0), ("q", 0)): a(x)
        stamp(a, 5)
        a(self.M8(0, 0)); a(self.M16(0, 0))
        for x in issue(("q", 2)) + issue(("q", 3)): a(x)
        nxt = 1
        LOOP = opt("loop", 1) and NSL == 4
        real = a; loop = a.label("attn")
        for blk in range(128):
            st, b = divmod(blk, 4)
            if LOOP:
                if blk == 16: a(f"s_mov_b32 {s(self.sCnt)}, 6\n.p2align 3\n{loop}:")
                if blk == 32:
                    a(f"s_sub_u32 {s(self.sCnt)}, {s(self.sCnt)}, 1\ns_cmp_lg_u32 {s(self.sCnt)}, 0\ns_cbranch_scc1 {loop}")
                    a = lambda x: None
                if blk == 112: a = real
            e = [f"v_exp_f32 {v(self.S[b]+r)}, {v(self.S[b]+r)}" for r in range(16)]
            nb = (b + 1) % 4; nst = st if b < 3 else st + 1
            pb = (b - 1) % 4; pst = st if b > 0 else st - 1
            fin = blk == 127
            w = []
            if blk < 3: w = need(("q", blk + 1), ("v", 0)) if blk == 1 else need(("q", blk + 1))
            if b == 3 and not fin: w = need(("k", nst), ("v", nst))
            for x in w: a(x)
            extra = []
            if nxt < 32 and blk >= 4 * (nxt - NSL + 1) + (1 if nxt >= NSL - 1 else -100) and (b == 1 or nxt < NSL):
                extra = issue(("k", nxt)) + issue(("v", nxt)); nxt += 1
            if blk == gate: extra = extra + [f"ds_write_b32 {v(VBW)}, {v(self.idx)} offset:32"]
            body = ([] if fin else [self.M8(nb, nst % NSL)]) + e[0:4] + ([] if fin else [self.M16(nb, nst % NSL)]) + e[4:7] + [self.SM(pb, pst % NSL, 0)] + e[7:10] + [self.SM(pb, pst % NSL, 1)] + extra + e[10:16]
            for x in body: a(x)
        if gate >= 128: a(f"ds_write_b32 {v(VBW)}, {v(self.idx)} offset:32")
        a("s_nop 1")
        a(self.SM(3, 31 % NSL, 0)); a(self.SM(3, 31 % NSL, 1))
    def maxpass(self):
        a = self.a; t = self.t
        a(f"s_mov_b32 {s(self.sK)}, {s(self.sK0)}")
        for b in range(4): a(f"v_mov_b32 {v(self.M+b)}, 0xff800000")
        a(f"s_mov_b32 {s(self.sCnt)}, 32")
        loop = a.label("maxp")
        a(f"{loop}:")
        for x in self.kv_loads(0, withv=False): a(x)
        a("s_waitcnt vmcnt(0)")
        for b in range(4): a(self.M8(b, 0)); a(self.M16(b, 0))
        a("s_nop 11")
        for b in range(4):
            for r in range(0, 16, 2):
                a(f"v_max3_f32 {v(self.M+b)}, {v(self.S[b]+r)}, {v(self.S[b]+r+1)}, {v(self.M+b)}")
        a(f"s_sub_u32 {s(self.sCnt)}, {s(self.sCnt)}, 1\ns_cmp_lg_u32 {s(self.sCnt)}, 0\ns_cbranch_scc1 {loop}")
        a(f"""
        s_lshl_b32 s61, {s(S_W)}, 10
        s_add_u32 s61, s61, {L_ARED}
        v_lshl_add_u32 {v(t)}, {v(VL)}, 4, s61
        ds_write_b128 {v(t)}, {v(self.M,4)}
        s_waitcnt lgkmcnt(0)
        """)
        self.bar(count=False)
        S = self.S[0]
        a(f"""
        v_and_b32 {v(t)}, 31, {v(VL)}
        s_lshl_b32 s61, s56, 10
        s_add_u32 s61, s61, {L_ARED}
        v_lshl_add_u32 {v(t)}, {v(t)}, 4, s61
        ds_read_b128 {v(S,4)}, {v(t)}
        ds_read_b128 {v(S+4,4)}, {v(t)} offset:512
        ds_read_b128 {v(S+8,4)}, {v(t)} offset:2048
        ds_read_b128 {v(S+12,4)}, {v(t)} offset:2560
        s_waitcnt lgkmcnt(0)
        """)
        self.bar(count=False)
        a("s_mov_b32 exec_lo, 0")
        for b in range(4):
            m = self.M + b
            a(f"""
            v_max3_f32 {v(m)}, {v(S+b)}, {v(S+4+b)}, {v(S+8+b)}
            v_max_f32 {v(m)}, {v(m)}, {v(S+12+b)}
            v_sub_f32 {v(m)}, 0, {v(m)}
            v_and_b32 {v(t)}, 0xffff0000, {v(m)}
            v_sub_f32 {v(t+1)}, {v(m)}, {v(t)}
            v_and_b32 {v(t+2)}, 0xffff0000, {v(t+1)}
            v_sub_f32 {v(t+1)}, {v(t+1)}, {v(t+2)}
            v_lshrrev_b32 {v(t)}, 16, {v(t)}
            v_or_b32 {v(self.Q[b]+4)}, {v(t)}, {v(t+2)}
            v_lshrrev_b32 {v(self.Q[b]+5)}, 16, {v(t+1)}
            """)
        a("s_mov_b32 exec_lo, -1")
    def epi_setup(self):
        a = self.a; t = self.t; w = self.wo; WB = 6656
        a(f"""
        s_mul_i32 s61, {s(S_W)}, {WB}
        s_add_u32 s61, s61, {L_ARED}
        s_xor_b32 s62, {s(S_W)}, 2
        s_mul_i32 s62, s62, {WB}
        s_add_u32 s62, s62, {L_ARED}
        v_lshl_add_u32 {v(w)}, {v(VL)}, 4, s61
        v_lshl_add_u32 {v(w+1)}, {v(VL)}, 2, s61
        v_lshl_add_u32 {v(w+2)}, {v(VL)}, 4, s62
        v_lshl_add_u32 {v(w+3)}, {v(VL)}, 2, s62
        s_lshl_b32 s64, {s(S_I1)}, 1
        s_add_u32 s64, s64, s56
        s_lshl_b32 s64, s64, 1
        s_add_u32 s64, s64, s57
        s_mul_i32 s64, s64, {4*OREC}
        s_add_u32 s64, s64, {WS_O}
        s_add_u32 s65, s64, {2*OREC}
        v_bfe_u32 {v(t)}, {v(VL)}, 4, 1
        v_mul_u32_u24 {v(t)}, {OREC}, {v(t)}
        v_and_b32 {v(t+1)}, 15, {v(VL)}
        v_lshrrev_b32 {v(t+2)}, 5, {v(VL)}
        v_lshl_add_u32 {v(t+2)}, {v(t+2)}, 8, {v(t)}
        v_lshl_add_u32 {v(t+2)}, {v(t+1)}, 4, {v(t+2)}
        s_lshl_b32 s61, {s(S_I0)}, 9
        v_add_u32 {v(w+4)}, s61, {v(t+2)}
        v_lshl_add_u32 {v(t+3)}, {v(t+1)}, 3, {v(t)}
        s_lshl_b32 s61, {s(S_I0)}, 7
        s_add_u32 s61, s61, 16384
        v_add_u32 {v(w+5)}, s61, {v(t+3)}
        """)
    def reduce_store(self, lab_retry):
        a = self.a; t = self.t; w = self.wo
        l1 = a.label("red1"); l2 = a.label("red2")
        a(f"s_cmp_eq_u32 s57, 0\ns_cbranch_scc0 {l1}")
        for kh in range(2):
            if kh: a(f"{l1}:")
            for i in range(2):
                O = self.O[2 * (1 - kh) + i]
                for g in range(3):
                    a(f"ds_write_b128 {v(w)}, {v(O+4*g,4)} offset:{3328*i + 1024*g}")
                a(f"ds_write_b32 {v(w+1)}, {v(O+12)} offset:{3328*i + 3072}")
            self.bar(count=(kh == 0))
            for i in range(2):
                a(f"ds_read_b32 {v(self.S[i]+12)}, {v(w+3)} offset:{3328*i + 3072}")
                for g in range(3):
                    a(f"ds_read_b128 {v(self.S[i]+4*g,4)}, {v(w+2)} offset:{3328*i + 1024*g}")
            for i in range(2):
                O = self.O[2 * kh + i]
                a(f"s_waitcnt lgkmcnt({4*(1-i)})")
                a(f"v_add_f32 {v(self.S[i]+12)}, {v(self.S[i]+12)}, {v(O+12)}")
                a(f"v_rcp_f32 {v(self.S[i]+13)}, {v(self.S[i]+12)}")
                for r in range(12): a(f"v_add_f32 {v(self.S[i]+r)}, {v(self.S[i]+r)}, {v(O+r)}")
            if not kh: a(f"s_branch {l2}")
        a(f"{l2}:")
        for i in range(2):
            P = self.S[2] + 8 * i
            for r in range(12): a(f"v_mul_f32 {v(self.S[i]+r)}, {v(self.S[i]+r)}, {v(self.S[i]+13)}")
            for r in range(6): a(f"v_cvt_pk_bf16_f32 {v(P+r)}, {v(self.S[i]+2*r)}, {v(self.S[i]+2*r+1)}")
            a(f"buffer_store_dwordx4 {v(P,4)}, {v(w+4)}, {s(SW,4)}, {s(64+i)} offen sc1")
            a("s_mov_b32 exec_hi, 0")
            a(f"buffer_store_dwordx2 {v(P+4,2)}, {v(w+5)}, {s(SW,4)}, {s(64+i)} offen sc1")
            a("s_mov_b32 exec_hi, -1")
        a(f"""
        v_min_f32 {v(t+4)}, {v(self.S[0]+12)}, {v(self.S[1]+12)}
        v_max_f32 {v(t+5)}, {v(self.S[0]+12)}, {v(self.S[1]+12)}
        v_add_f32 {v(t+6)}, {v(self.S[0]+12)}, {v(self.S[1]+12)}
        """)
        for i in range(2):
            for r in range(12):
                a(f"v_fma_f32 {v(t+6)}, {v(self.S[i]+r)}, 0, {v(t+6)}")
        a(f"""
        v_cmp_nle_f32 vcc, 0x2f800000, {v(t+4)}
        s_mov_b64 s[62:63], vcc
        v_cmp_nge_f32 vcc, 0x5f800000, {v(t+5)}
        s_or_b64 s[62:63], s[62:63], vcc
        v_cmp_u_f32 vcc, {v(t+6)}, {v(t+6)}
        s_or_b64 s[62:63], s[62:63], vcc
        s_cselect_b32 s61, 1, 0
        v_mov_b32 {v(t+4)}, s61
        ds_write_b32 {v(VBW)}, {v(t+4)} offset:48
        s_waitcnt vmcnt(0)
        """)
        self.bar()
        a(f"""
        ds_read_b32 {v(t+4)}, {v(VBR)} offset:48
        s_waitcnt lgkmcnt(0)
        v_cmp_lt_u32 vcc, {s(self.sTry)}, {v(t+4)}
        s_cbranch_vccnz {lab_retry}
        """)

def wo_addr(a, vo, t, S):
    a.srd(S, P_WO, 640 * 1280)
    for i in range(5):
        a(f"""
        v_add_u32 {v(t)}, {64*i}, {v(VL)}
        v_mul_u32_u24 {v(t+1)}, 6554, {v(t)}
        v_lshrrev_b32 {v(t+1)}, 16, {v(t+1)}
        v_mul_u32_u24 {v(t+1)}, {1280-160}, {v(t+1)}
        v_lshl_add_u32 {v(vo+i)}, {v(VL)}, 4, {v(t+1)}
        """)
    a(f"v_add_u32 {v(vo+4)}, 4096, {v(vo+4)}")
def wo_load(a, vo, S, s_ct, groups):
    a(f"""
    s_mul_i32 s60, {s(s_ct)}, 160
    s_mul_i32 s61, {s(S_W)}, {32*1280}
    s_add_u32 s60, s60, s61
    s_add_u32 s60, s60, {groups[0]*128*1280}
    s_mul_i32 s61, {s(S_W)}, 5120
    """)
    for g in groups:
        a(f"s_add_u32 m0, s61, {L_WO + g*20480}\ns_nop 0")
        for i in range(4):
            a(f"buffer_load_dwordx4 {v(vo+i)}, {s(S,4)}, s60 offen offset:{1024*i} lds")
        a(f"s_add_u32 m0, s61, {L_WO + g*20480 + 4096}\ns_nop 0")
        a(f"buffer_load_dwordx4 {v(vo+4)}, {s(S,4)}, s60 offen lds")
        if g != groups[-1]: a(f"s_add_u32 s60, s60, {128*1280}")

class A3:
    def __init__(self, a):
        self.a = a
        R = Regs(16)
        self.aw = R.alloc("aw", 4); self.t = R.alloc("t", 4)
        self.Of = R.alloc("Of", 80, 4)
        self.W = [R.alloc(f"W{i}", 20, 4) for i in range(3)]
        self.acc = R.alloc("acc", 20, 4)
        self.SO = 52
    def setup(self):
        a = self.a; t = self.t; aw = self.aw
        a.srd(self.SO, P_OUT, 2048 * 5120)
        a(f"""
        v_bfe_u32 {v(t)}, {v(VL)}, 2, 2
        v_bfe_u32 {v(t+1)}, {v(VL)}, 4, 1
        v_lshl_add_u32 {v(t+1)}, {v(t+1)}, 2, {v(t)}
        v_lshrrev_b32 {v(t+2)}, 5, {v(VL)}
        v_mad_u32_u24 {v(t+1)}, {v(t+2)}, 20, {v(t+1)}
        v_mul_u32_u24 {v(t+1)}, 160, {v(t+1)}
        v_and_b32 {v(t+3)}, 3, {v(VL)}
        v_lshlrev_b32 {v(t+3)}, 3, {v(t+3)}
        v_add_u32 {v(t+3)}, {L_WO}, {v(t+3)}
        v_add_u32 {v(aw)}, {v(t+1)}, {v(t+3)}
        v_add_u32 {v(aw+1)}, 51200, {v(aw)}
        v_lshrrev_b32 {v(t+2)}, 4, {v(VL)}
        v_mad_u32_u24 {v(t+1)}, {v(t+2)}, 20, {v(t)}
        v_add_u32 {v(t+1)}, 16, {v(t+1)}
        v_mul_u32_u24 {v(t+1)}, 160, {v(t+1)}
        v_add_u32 {v(aw+2)}, {v(t+1)}, {v(t+3)}
        v_add_u32 {v(aw+3)}, 51200, {v(aw+2)}
        s_lshl_b32 s56, {s(S_I0)}, 2
        s_add_u32 s56, s56, {s(S_W)}
        s_mul_i32 s57, s56, {OREC}
        s_add_u32 s57, s57, {WS_O}
        s_mul_i32 s58, s56, {16*5120}
        s_mul_i32 s59, {s(S_I1)}, 320
        s_add_u32 s58, s58, s59
        v_lshlrev_b32 {v(t)}, 4, {v(VL)}
        v_lshlrev_b32 {v(t+1)}, 3, {v(VL)}
        v_and_b32 {v(t+3)}, 15, {v(VL)}
        v_mul_u32_u24 {v(t+3)}, 5120, {v(t+3)}
        v_lshl_add_u32 {v(t+2)}, {v(t+2)}, 4, {v(t+3)}
        """)
    def poll_o(self):
        a = self.a; sk = a.label("nopo")
        a(f"""
        s_cmp_lg_u32 {s(S_W)}, 1
        s_cbranch_scc1 {sk}
        s_lshr_b32 s60, {s(S_I0)}, 2
        s_mul_i32 s60, s60, {32*FSTR}
        s_add_u32 s60, s60, {FL_O}
        v_and_b32 v6, 31, {v(VL)}
        v_mul_u32_u24 v6, {FSTR}, v6
        v_add_u32 v6, s60, v6
        """)
        poll(a, 6, 7)
        a(f"{sk}:\ns_waitcnt vmcnt(0)")
    def load_o(self):
        a = self.a; t = self.t
        for st in range(16):
            if st and st % 4 == 0: a("s_add_u32 s57, s57, 4096")
            a(f"buffer_load_dwordx4 {v(self.Of+4*st,4)}, {v(t)}, {s(SW,4)}, s57 offen offset:{1024*(st%4)} sc1")
        a("s_add_u32 s57, s57, 4096")
        for st in range(4):
            for j in range(2):
                a(f"buffer_load_dwordx2 {v(self.Of+64+4*st+2*j,2)}, {v(t+1)}, {s(SW,4)}, s57 offen offset:{1024*st+512*j} sc1")
    def wreads(self, st):
        W = self.W[st % 3]; out = []
        for i in range(5):
            for j in range(2):
                if st < 16: off = st * 6400 + j * 1280 + i * 32; r = self.aw
                else: off = (st - 16) * 25600 + j * 12800 + i * 32; r = self.aw + 2
                if off >= 51200: off -= 51200; r += 1
                out.append(f"ds_read_b64_tr_b16 {v(W+4*i+2*j,2)}, {v(r)} offset:{off}")
        return out
    def pre(self):
        for st in range(2):
            for x in self.wreads(st): self.a(x)
    def compute(self):
        a = self.a
        for st in range(20):
            nv = (24 - (st + 1)) if st < 16 else (24 - (16 + 2 * (st - 15)))
            a(f"s_waitcnt vmcnt({nv}) lgkmcnt({10 if st < 19 else 0})")
            rd = self.wreads(st + 2) if st < 18 else []
            W = self.W[st % 3]
            for i in range(5):
                d = self.acc + 4 * i
                a(f"v_mfma_f32_16x16x32_bf16 {v(d,4)}, {v(W+4*i,4)}, {v(self.Of+4*st,4)}, {'0' if st == 0 else v(d,4)}")
                for x in rd[2*i:2*i+2]: a(x)
        a("s_nop 7")
        for i in range(5):
            a(f"buffer_store_dwordx4 {v(self.acc+4*i,4)}, {v(self.t+2)}, {s(self.SO,4)}, s58 offen offset:{64*i} {OPT.get('oa','').replace('+',' ')}")
```

```python
from fcommon import *
from fl import S_TC, S_CG, S_I0, S_I1, wo_addr

class MRegs:
    def __init__(self):
        R = Regs(24)
        self.L1 = R.alloc("L1", 28, 4); self.LP = self.L1 + 10; self.LS = self.L1 + 20
        self.ax = [self.L1, self.L1 + 2]
        self.aw = [self.L1 + 4, self.L1 + 8]
        self.t1 = self.L1 + 12
        self.nn = self.L1 + 16
        self.t = R.alloc("t", 16, 4)
        self.CP = R.alloc("CP", 8, 4)
        self.ar = [R.alloc(f"ar{i}", 6) for i in range(2)]
        self.acc = R.alloc("acc", 64, 4)
        self.F = R.alloc("F", 64, 4)
        self.X = R.alloc("X", 40, 4)
        self.end = R.next

class A1:
    def __init__(self, a, m):
        self.a = a
        self.ax = m.ax; self.aw = m.aw; self.t = m.t1; self.F = [m.F, m.F + 32]; self.acc = m.acc; self.nn = m.nn
        self.pk = m.X; self.sa = m.X + 32; self.stores = [[], []]
    def setup(self):
        a = self.a; t = self.t; ax = self.ax; aw = self.aw
        a(f"""
        s_and_b32 s52, {s(S_W)}, 1
        s_lshr_b32 s53, {s(S_W)}, 1
        v_and_b32 {v(t)}, 15, {v(VL)}
        v_lshrrev_b32 {v(t+1)}, 4, {v(VL)}
        v_lshrrev_b32 {v(t+2)}, 1, {v(t)}
        v_xor_b32 {v(t+2)}, {v(t+2)}, {v(t+1)}
        v_lshlrev_b32 {v(t+2)}, 4, {v(t+2)}
        v_lshl_add_u32 {v(t+2)}, {v(t)}, 7, {v(t+2)}
        s_lshl_b32 s54, s52, 13
        s_add_u32 s54, s54, {L_RING}
        v_add_u32 {v(ax[0])}, s54, {v(t+2)}
        v_xor_b32 {v(ax[0]+1)}, 64, {v(ax[0])}
        v_bfe_u32 {v(t+2)}, {v(VL)}, 2, 2
        v_lshl_add_u32 {v(t+3)}, {v(t+1)}, 3, {v(t+2)}
        v_lshlrev_b32 {v(t+3)}, 8, {v(t+3)}
        v_bfe_u32 {v(t+2)}, {v(VL)}, 2, 3
        s_lshl_b32 s54, s53, 2
        v_xor_b32 {v(t+2)}, s54, {v(t+2)}
        v_lshl_add_u32 {v(t+3)}, {v(t+2)}, 5, {v(t+3)}
        v_and_b32 {v(t+2)}, 3, {v(VL)}
        v_lshl_add_u32 {v(t+3)}, {v(t+2)}, 3, {v(t+3)}
        v_add_u32 {v(aw[0])}, {L_RING + 16384}, {v(t+3)}
        v_xor_b32 {v(aw[0]+1)}, 32, {v(aw[0])}
        v_xor_b32 {v(aw[0]+2)}, 64, {v(aw[0])}
        v_xor_b32 {v(aw[0]+3)}, 0x60, {v(aw[0])}
        """)
        for j in range(2): a(f"v_add_u32 {v(ax[1]+j)}, 0x10000, {v(ax[0]+j)}")
        for j in range(4): a(f"v_add_u32 {v(aw[1]+j)}, 0x10000, {v(aw[0]+j)}")
    def reads(self, step):
        st, ks = divmod(step, 2); slot = st % NRING; F = self.F[step & 1]
        base = (slot & 1) * 32768; se = slot // 2; out = []
        for i in range(4):
            out.append(f"ds_read_b128 {v(F+4*i,4)}, {v(self.ax[se]+ks)} offset:{base + 2048*i}")
            for j in range(2):
                out.append(f"ds_read_b64_tr_b16 {v(F+16+4*i+2*j,2)}, {v(self.aw[se]+i)} offset:{base + 8192*ks + 1024*j}")
        return out
    def mf(self, step, vmode):
        F = self.F[step & 1]; out = []
        for tt in range(4):
            for ct in (range(4) if tt % 2 == 0 else range(3, -1, -1)):
                d = self.acc + 16 * tt + 4 * ct
                A, B = (F + 4*tt, F + 16 + 4*ct) if vmode else (F + 16 + 4*ct, F + 4*tt)
                out.append(f"v_mfma_f32_16x16x32_bf16 {v(d,4)}, {v(A,4)}, {v(B,4)}, {'0' if step == 0 else v(d,4)}")
        return out
    def loop(self, vmode):
        a = self.a
        for step in range(21):
            if step: a("s_waitcnt lgkmcnt(0)")
            if step % 2 == 0: a("s_barrier")
            if step == 0: stamp(a, 1)
            if opt("qst") == 1 and step % 2 == 0 and step: stamp(a, 1 + step // 2, True)
            rd = self.reads(step) if step < 20 else []
            mm = self.mf(step - 1, vmode) if step else []
            for i in range(16):
                for x in rd[2*i:2*i+2]: a(x)
                if i < len(mm): a(mm[i])
            if step == 18: nonce_load(a, self.nn)
    def epilogue(self, vmode):
        a = self.a; t = self.t; acc = self.acc; pk = self.pk; sa = self.sa
        now = opt('st0', 8)
        a(f"s_lshl_b32 s54, {s(S_I0)}, 1\ns_add_u32 s54, s54, s52\ns_lshl_b32 s54, s54, 1")
        if not vmode:
            a(f"""
            s_cmp_lt_u32 {s(S_I1)}, 5
            s_cselect_b32 s55, {QREC}, 0
            s_cselect_b32 s57, 0, {KVREC}
            s_add_u32 s55, s55, s57
            s_cmp_lt_u32 {s(S_I1)}, 5
            s_cselect_b32 s57, 0, {WS_KV - 5*32*256}
            s_cselect_b32 s60, {QSCALE}, 1.0
            s_mov_b32 s61, s60
            s_mul_i32 s58, s54, s55
            s_add_u32 s58, s58, s57
            s_lshl_b32 s57, {s(S_I1)}, 1
            s_add_u32 s57, s57, s53
            s_lshl_b32 s57, s57, 12
            s_add_u32 s58, s58, s57
            s_add_u32 s59, s58, s55
            v_lshlrev_b32 {v(t+1)}, 8, {v(t+1)}
            v_lshl_add_u32 {v(sa)}, {v(t)}, 3, {v(t+1)}
            """)
            for tt in range(4):
                for ct in range(4):
                    d = acc + 16 * tt + 4 * ct; p = pk + 8 * tt + 2 * ct
                    a(f"v_pk_mul_f32 {v(d,2)}, {v(d,2)}, s[60:61]\nv_pk_mul_f32 {v(d+2,2)}, {v(d+2,2)}, s[60:61]")
                    a(f"v_cvt_pk_bf16_f32 {v(p)}, {v(d)}, {v(d+1)}\nv_cvt_pk_bf16_f32 {v(p+1)}, {v(d+2)}, {v(d+3)}")
                    x = f"buffer_store_dwordx2 {v(p,2)}, {v(sa)}, {s(SW,4)}, {s(58+(tt>>1))} offen offset:{1024*ct + 128*(tt&1)} sc1"
                    if 4 * tt + ct < 2 * now: a(x)
                    else: self.stores[0].append(x)
            return 2 * now
        a(f"""
        s_mul_i32 s58, s54, {KVREC}
        s_lshl_b32 s57, {s(S_I1)}, 1
        s_add_u32 s57, s57, s53
        s_sub_u32 s57, s57, 20
        s_lshl_b32 s55, s57, 7
        s_add_u32 s60, s58, s55
        s_add_u32 s60, s60, {WS_KV + 81920}
        s_lshl_b32 s57, s57, 10
        s_add_u32 s58, s58, s57
        s_add_u32 s58, s58, {WS_KV + 40960}
        s_add_u32 s59, s58, {KVREC}
        v_mul_u32_u24 {v(t+1)}, 10240, {v(t+1)}
        v_lshl_add_u32 {v(sa)}, {v(t)}, 4, {v(t+1)}
        v_lshrrev_b32 {v(t+2)}, 5, {v(VL)}
        v_mul_u32_u24 {v(t+2)}, {KVREC - 128}, {v(t+2)}
        v_lshl_add_u32 {v(t+2)}, {v(VL)}, 2, {v(t+2)}
        v_mov_b32 {v(t+3)}, 0x3f803f80
        buffer_store_dword {v(t+3)}, {v(t+2)}, {s(SW,4)}, s60 offen sc1
        """)
        for u in range(2):
            for ct in range(4):
                p = pk + 16 * u + 4 * ct
                for h in range(2):
                    d = acc + 16 * (2*u + h) + 4 * ct
                    a(f"v_cvt_pk_bf16_f32 {v(p+2*h)}, {v(d)}, {v(d+1)}\nv_cvt_pk_bf16_f32 {v(p+2*h+1)}, {v(d+2)}, {v(d+3)}")
                x = f"buffer_store_dwordx4 {v(p,4)}, {v(sa)}, {s(SW,4)}, {s(58+u)} offen offset:{256*ct} sc1"
                if 4 * u + ct < now: a(x)
                else: self.stores[1].append(x)
        return now + 1
    def trickle(self, k):
        a = self.a; lv = a.label("tv"); ld = a.label("td")
        a(f"s_cmp_lg_u32 s65, 0\ns_cbranch_scc1 {lv}")
        for x in self.stores[0][2*k:2*k+2]: a(x)
        a(f"{lv}:\ns_cmp_lg_u32 s65, 1\ns_cbranch_scc1 {ld}")
        a(self.stores[1][k])
        a(f"{ld}:")

class B1:
    def __init__(self, a, bar, m):
        self.a = a; self.bar = bar
        self.t = m.t; self.L1 = m.L1; self.LP = m.LP; self.LS = m.LS; self.CP = m.CP; self.ar = m.ar
        self.KEEP = m.acc; self.SEND = m.acc + 20; self.RECV = m.acc + 40
        self.F = [m.F, m.F + 28]; self.Y = m.F
        self.U = m.X
        self.X = m.acc
        self.SX2 = 56
    def cprep_addr(self):
        a = self.a
        for it in range(2):
            u, c, d = self.CP + 4 * it, self.CP + 1 + 4 * it, self.CP + 2 + 4 * it
            a(f"""
            s_lshl_b32 s60, {s(S_W)}, 2
            s_add_u32 s60, s60, {16*it}
            v_lshrrev_b32 {v(u)}, 4, {v(VL)}
            v_add_u32 {v(u)}, s60, {v(u)}
            v_min_u32 {v(u)}, 24, {v(u)}
            s_mul_i32 s60, {s(S_TC)}, 25
            v_add_u32 {v(u)}, s60, {v(u)}
            v_mul_u32_u24 {v(d)}, 3277, {v(u)}
            v_lshrrev_b32 {v(d)}, 16, {v(d)}
            v_mul_u32_u24 {v(c)}, 20, {v(d)}
            v_sub_u32 {v(c)}, {v(u)}, {v(c)}
            v_and_b32 {v(d+1)}, 15, {v(VL)}
            s_mul_i32 s60, {s(S_TC)}, 5
            s_lshr_b32 s60, s60, 2
            v_subrev_u32 {v(u)}, s60, {v(d)}
            v_lshl_add_u32 {v(u)}, {v(u)}, 4, {v(d+1)}
            v_mul_u32_u24 {v(u)}, 192, {v(u)}
            v_lshl_add_u32 {v(u)}, {v(c)}, 3, {v(u)}
            s_lshl_b32 s60, {s(S_CG)}, 5
            s_and_b32 s60, s60, 32
            v_add_u32 {v(u)}, s60, {v(u)}
            v_mul_u32_u24 {v(d)}, {HREC}, {v(d)}
            v_lshl_add_u32 {v(d)}, {v(c)}, 8, {v(d)}
            v_lshl_add_u32 {v(d)}, {v(d+1)}, 4, {v(d)}
            v_lshlrev_b32 {v(c)}, 5, {v(c)}
            """)
    def craw_addr(self):
        a = self.a
        self.cr = [self.t + 10, self.CP + 3, self.CP + 7]
        a(f"s_and_b32 s60, {s(S_W)}, 1\ns_mul_i32 s60, s60, 192")
        for i in range(3):
            a(f"""
            v_add_u32 v6, s60, {v(VL)}
            v_mul_u32_u24 v7, 5462, v6
            v_lshrrev_b32 v7, 16, v7
            v_mul_u32_u24 v7, {1280-192}, v7
            v_lshl_add_u32 v6, v6, 4, v7
            v_subrev_u32 {v(self.cr[i])}, {1024*i}, v6
            s_add_u32 s60, s60, 64
            """)
    def craw_load(self):
        a = self.a
        a(f"""
        s_mul_i32 s6, {s(S_TC)}, 5
        s_lshr_b32 s6, s6, 2
        s_mul_i32 s6, s6, {16*1280}
        s_mul_i32 s7, {s(S_CG)}, 160
        s_and_b32 s7, s7, 0xffc0
        s_add_u32 s6, s6, s7
        s_cmp_lt_u32 {s(S_W)}, 2
        s_cselect_b32 {s(self.SX2)}, {s(P_CRE)}, {s(P_CIM)}
        s_cselect_b32 {s(self.SX2+1)}, {s(P_CRE+1)}, {s(P_CIM+1)}
        s_mov_b32 {s(self.SX2+2)}, {640*1280}
        s_mov_b32 {s(self.SX2+3)}, 0x00020000
        s_mul_i32 s7, {s(S_W)}, 3072
        s_add_u32 m0, s7, {L_CRAW}
        s_nop 0
        """)
        for i in range(3):
            a(f"buffer_load_dwordx4 {v(self.cr[i])}, {s(self.SX2,4)}, s6 offen offset:{1024*i} lds")
    def cprep_calc(self):
        a = self.a; t = self.t + 8; X = self.Y + 40; K = self.X
        lds_wait(a, v(VGEN))
        a(f"s_mul_i32 s60, {s(S_CG)}, {20*256}\ns_add_u32 s60, s60, {WS_C}")
        for it in range(2):
            a(f"ds_read_b128 {v(K+8*it,4)}, {v(self.CP+1+4*it)} offset:{L_COEF}\nds_read_b128 {v(K+8*it+4,4)}, {v(self.CP+1+4*it)} offset:{L_COEF+16}")
            a(f"ds_read_b64 {v(X+4*it,2)}, {v(self.CP+4*it)} offset:{L_CRAW}\nds_read_b64 {v(X+4*it+2,2)}, {v(self.CP+4*it)} offset:{L_CRAW+6144}")
        for it in range(2):
            a(f"s_waitcnt lgkmcnt({4-4*it})")
            o = X + 8 + 4 * it
            for i in range(4):
                re = X + 4 * it + (i >> 1); im = re + 2
                if i & 1: a(f"v_and_b32 {v(t+4)}, 0xffff0000, {v(re)}\nv_and_b32 {v(t+5)}, 0xffff0000, {v(im)}")
                else: a(f"v_lshlrev_b32 {v(t+4)}, 16, {v(re)}\nv_lshlrev_b32 {v(t+5)}, 16, {v(im)}")
                k = K + 8*it + 2 * i
                a(f"""
                v_pk_mul_f32 {v(t+6,2)}, {v(t+4,2)}, {v(k,2)} op_sel:[0,0] op_sel_hi:[0,1] neg_hi:[0,1]
                v_pk_fma_f32 {v(t+6,2)}, {v(t+4,2)}, {v(k,2)}, {v(t+6,2)} op_sel:[1,1,0] op_sel_hi:[1,0,1] neg_lo:[1,0,0] neg_hi:[1,0,0]
                v_cvt_pk_bf16_f32 {v(o+i)}, {v(t+6)}, {v(t+7)}
                """)
            a(f"buffer_store_dwordx4 {v(o,4)}, {v(self.CP+2+4*it)}, {s(SW,4)}, s60 offen sc1")
    def gemm_setup(self):
        a = self.a; t = self.t + 10; ar = self.ar[0]
        a(f"""
        s_and_b32 s60, {s(S_W)}, 1
        s_lshr_b32 s61, {s(S_W)}, 1
        s_lshl_b32 s6, s60, 1
        s_add_u32 s6, s6, s61
        s_xor_b32 s7, s6, 2
        s_mul_i32 s6, s6, 7168
        s_mul_i32 s7, s7, 7168
        s_add_u32 s6, s6, {L_RING + 5120}
        s_add_u32 s7, s7, {L_RING + 5120}
        v_and_b32 {v(t)}, 15, {v(VL)}
        v_lshrrev_b32 {v(t+1)}, 4, {v(VL)}
        v_lshrrev_b32 {v(t+2)}, 1, {v(t)}
        v_xor_b32 {v(t+2)}, {v(t+2)}, {v(t+1)}
        v_lshlrev_b32 {v(t+2)}, 4, {v(t+2)}
        v_lshl_add_u32 {v(t+3)}, {v(t)}, 7, {v(t+2)}
        v_add_u32 {v(ar)}, s6, {v(t+3)}
        v_xor_b32 {v(ar+1)}, 64, {v(ar)}
        v_add_u32 {v(ar+2)}, s7, {v(t+3)}
        v_xor_b32 {v(ar+3)}, 64, {v(ar+2)}
        v_lshrrev_b32 {v(t+4)}, 3, {v(t)}
        v_mul_u32_u24 {v(t+4)}, {7168-1024}, {v(t+4)}
        s_mul_i32 s6, s60, 14336
        s_add_u32 s6, s6, {L_RING}
        v_add3_u32 {v(ar+4)}, {v(t+3)}, {v(t+4)}, s6
        v_xor_b32 {v(ar+5)}, 64, {v(ar+4)}
        s_and_b32 s40, {s(S_CG)}, 3
        s_mul_i32 s40, s40, 3
        s_and_b32 s6, {s(S_TC)}, 7
        s_add_u32 s40, s40, s6
        s_sub_u32 s6, s40, 10
        s_cmp_ge_u32 s40, 10
        s_cselect_b32 s40, s6, s40
        """)
        for j in range(6): a(f"v_add_u32 {v(self.ar[1]+j)}, 0x10000, {v(ar+j)}")
    def reads(self, step):
        st, ks = divmod(step, 2); F = self.F[step & 1]; slot = (st + 10) % NRING
        off = (slot & 1) * 32768; ar = self.ar[slot // 2]
        out = [f"ds_read_b128 {v(F+4*u,4)}, {v(ar+2*u+ks)} offset:{off}" for u in range(2)]
        out += [f"ds_read_b128 {v(F+8+4*g,4)}, {v(ar+4+ks)} offset:{off + g*1024}" for g in range(5)]
        return out
    def mf(self, step):
        F = self.F[step & 1]; out = []
        for u in range(2):
            for g in (range(5) if u == 0 else range(4, -1, -1)):
                d = (self.KEEP if u == 0 else self.SEND) + 4 * g
                out.append(f"v_mfma_f32_16x16x32_bf16 {v(d,4)}, {v(F+4*u,4)}, {v(F+8+4*g,4)}, {'0' if step == 0 else v(d,4)}")
        return out
    def cexp(self, dst, z, mul, t):
        a = self.a
        if mul is None:
            a(f"v_fract_f32 {v(t+1)}, {v(z+1)}\nv_exp_f32 {v(t)}, {v(z)}")
        else:
            a(f"v_mul_f32 {v(t)}, {mul}, {v(z)}\nv_mul_f32 {v(t+1)}, {mul}, {v(z+1)}\nv_fract_f32 {v(t+1)}, {v(t+1)}\nv_exp_f32 {v(t)}, {v(t)}")
        a(f"""
        v_cos_f32 {v(dst)}, {v(t+1)}
        v_sin_f32 {v(dst+1)}, {v(t+1)}
        s_nop 0
        v_mul_f32 {v(dst)}, {v(dst)}, {v(t)}
        v_mul_f32 {v(dst+1)}, {v(dst+1)}, {v(t)}
        """)
    def params_load(self):
        a = self.a; X = self.U
        a(f"""
        s_mul_i32 s60, {s(S_CG)}, 160
        s_and_b32 s61, {s(S_W)}, 1
        s_mul_i32 s61, s61, 80
        s_add_u32 s61, s61, s60
        v_min_u32 v6, 39, {v(VL)}
        v_lshl_add_u32 v6, v6, 1, s61
        """)
        for j, P in enumerate((P_LRE, P_LIM, P_LDT)):
            a.srd(self.SX2, P, 1280)
            a(f"buffer_load_ushort {v(X+j)}, v6, {s(self.SX2,4)}, 0 offen")
    def params1(self):
        a = self.a; X = self.U; lr, li, ld, z, Lb, k, t = X, X + 1, X + 2, X + 4, X + 6, X + 8, X + 10
        a(f"""
        v_lshlrev_b32 {v(ld)}, 16, {v(ld)}
        v_mul_f32 {v(ld)}, {LOG2E}, {v(ld)}
        v_exp_f32 {v(ld)}, {v(ld)}
        v_lshlrev_b32 {v(lr)}, 16, {v(lr)}
        v_lshlrev_b32 {v(li)}, 16, {v(li)}
        v_cvt_pk_bf16_f32 {v(ld)}, {v(ld)}, {v(ld)}
        v_and_b32 {v(ld)}, 0xffff0000, {v(ld)}
        v_mul_f32 {v(z)}, {v(ld)}, {v(lr)}
        v_mul_f32 {v(z+1)}, {v(ld)}, {v(li)}
        v_mul_f32 {v(z)}, {LOG2E}, {v(z)}
        v_mul_f32 {v(z+1)}, {INV2PI}, {v(z+1)}
        ds_write_b64 {v(self.t+4)}, {v(z,2)} offset:{L_AG}
        """)
        for i, mul in enumerate((4.0, 64.0, 512.0, 1024.0)): self.cexp(self.LS + 2 * i, z, hex(f2u(mul)), t)
        self.cexp(Lb, z, None, t)
        a(f"""
        ds_write_b64 {v(self.t+4)}, {v(Lb,2)} offset:{L_AG + 640}
        v_mul_f32 {v(t)}, {v(lr)}, {v(lr)}
        v_fmac_f32 {v(t)}, {v(li)}, {v(li)}
        v_rcp_f32 {v(t)}, {v(t)}
        v_add_f32 {v(t+1)}, -1.0, {v(Lb)}
        v_mul_f32 {v(k)}, {v(t+1)}, {v(lr)}
        v_fmac_f32 {v(k)}, {v(Lb+1)}, {v(li)}
        v_mul_f32 {v(k+1)}, {v(Lb+1)}, {v(lr)}
        v_fma_f32 {v(k+1)}, -{v(t+1)}, {v(li)}, {v(k+1)}
        v_add_f32 {v(t)}, {v(t)}, {v(t)}
        v_mul_f32 {v(k)}, {v(k)}, {v(t)}
        v_mul_f32 {v(k+1)}, {v(k+1)}, {v(t)}
        ds_write_b64 {v(self.t+4)}, {v(k,2)} offset:{L_COEF}
        """)
    def params2_read(self):
        a = self.a; X = self.RECV; t = self.t
        for d, o in ((X, L_AG), (self.L1, L_AG + 640)):
            a(f"ds_read_b128 {v(d,4)}, {v(t+2)} offset:{o}\nds_read_b128 {v(d+4,4)}, {v(t+2)} offset:{o+16}\nds_read_b64 {v(d+8,2)}, {v(t+3)} offset:{o}")
        a(f"""
        v_lshrrev_b32 {v(X+12)}, 4, {v(VL)}
        s_lshl_b32 s60, {s(S_W)}, 4
        v_lshl_add_u32 {v(X+12)}, {v(X+12)}, 2, s60
        v_cvt_f32_u32 {v(X+12)}, {v(X+12)}
        """)
    def params2(self, g):
        self.cexp(self.LP + 2 * g, self.RECV + 2 * g, v(self.RECV + 12), self.RECV + 14)
    def drain_check(self, block, flag_fn):
        a = self.a; sk = a.label("dc")
        a(f"s_cmp_lg_u32 s64, 0\ns_cbranch_scc1 {sk}")
        if not block: a(f"s_getreg_b32 s60, hwreg(HW_REG_IB_STS, 0, 4)\ns_cmp_lg_u32 s60, 0\ns_cbranch_scc1 {sk}")
        a(f"""
        s_waitcnt vmcnt(0)
        s_mov_b32 s64, 1
        v_mov_b32 v6, {L_BAR + 64}
        v_mov_b32 v7, 1
        s_mov_b64 exec, 1
        ds_add_rtn_u32 v7, v6, v7
        s_mov_b64 exec, -1
        s_waitcnt lgkmcnt(0)
        v_readfirstlane_b32 s60, v7
        s_cmp_lg_u32 s60, 3
        s_cbranch_scc1 {sk}
        """)
        flag_fn()
        a(f"{sk}:")
    def gemm(self, flag_fn, extras, dc0):
        a = self.a
        for step in range(21):
            if step: a("s_waitcnt lgkmcnt(0)")
            if step >= dc0 and (step % 2 == 0 or opt("dcall")): self.drain_check(step == 20, flag_fn)
            if step % 2 == 0 and step < 20: a("s_barrier")
            if opt("qst") == 2 and step % 2 == 0: stamp(a, 1 + step // 2, True)
            rd = self.reads(step) if step < 20 else []
            mm = self.mf(step - 1) if step else []
            for i in range(10):
                for x in rd[2*i:2*i+2]: a(x)
                if i < len(mm): a(mm[i])
            for f in extras.get(step, []): f()
    def exchange(self):
        a = self.a; t = self.t + 12
        l1 = a.label("xo"); l2 = a.label("xd")
        a(f"""
        s_mul_i32 s60, {s(S_W)}, 5440
        s_add_u32 s60, s60, {L_XCH}
        v_lshl_add_u32 {v(t)}, {v(VL)}, 4, s60
        s_xor_b32 s60, {s(S_W)}, 1
        s_mul_i32 s60, s60, 5440
        s_add_u32 s60, s60, {L_XCH}
        v_lshl_add_u32 {v(t+1)}, {v(VL)}, 4, s60
        s_nop 1
        """)
        for g in range(4, -1, -1):
            a(f"ds_write_b128 {v(t)}, {v(self.SEND+4*g,4)} offset:{1024*g}")
        self.bar()
        for g in range(5): a(f"ds_read_b128 {v(self.RECV+4*g,4)}, {v(t+1)} offset:{1024*g}")
        a(f"s_bitcmp1_b32 {s(S_W)}, 0\ns_cbranch_scc1 {l1}")
        for par in range(2):
            if par: a(f"{l1}:")
            re, im = (self.KEEP, self.RECV) if par == 0 else (self.RECV, self.KEEP)
            for g in range(5):
                a(f"s_waitcnt lgkmcnt({4-g})")
                for r in range(4):
                    o = 4 * g + (r & 2)
                    a(f"v_pk_mov_b32 {v(self.U+8*g+2*r,2)}, {v(re+o,2)}, {v(im+o,2)} op_sel:[{r&1},{r&1}]")
            if not par: a(f"s_branch {l2}")
        a(f"{l2}:")
    def warm(self):
        a = self.a
        a(f"""
        s_mul_i32 s7, {s(S_CG)}, 160
        s_and_b32 s7, s7, 0xffc0
        s_lshl_b32 s6, s2, 2
        s_add_u32 s6, s6, {s(S_W)}
        s_mul_i32 s6, s6, 800
        s_and_b32 s6, s6, 0xffffffc0
        s_add_u32 s18, {s(P_WO)}, s6
        s_addc_u32 s19, {s(P_WO+1)}, 0
        s_add_u32 s8, {s(P_DSK)}, s7
        s_addc_u32 s9, {s(P_DSK+1)}, 0
        """)
        lst = [(18, 128*i) for i in range(7)] + [(8, 64)] + [(18, 128*i + 64) for i in range(6)]
        for i, (b, o) in enumerate(lst): a(f"s_load_dword s{100 + (i & 1)}, {s(b,2)}, {o}")
    def cf1(self, d, L, h, u):
        return f"v_pk_fma_f32 {v(d,2)}, {v(h,2)}, {v(L,2)}, {v(u,2)} op_sel:[0,0,0] op_sel_hi:[1,0,1]"
    def cf2(self, d, L, h):
        return f"v_pk_fma_f32 {v(d,2)}, {v(h,2)}, {v(L,2)}, {v(d,2)} op_sel:[1,1,0] op_sel_hi:[0,1,1] neg_lo:[0,1,0]"
    def cfma(self, d, L, h, u):
        self.a(self.cf1(d, L, h, u)); self.a(self.cf2(d, L, h))
    def cfma5(self, d, L, h, u, hs=2, us=2):
        for g in range(5): self.a(self.cf1(d + 2*g, L + 2*g, h + hs*g, u + us*g))
        for g in range(5): self.a(self.cf2(d + 2*g, L + 2*g, h + hs*g))
    def scan_setup(self):
        a = self.a; t = self.t
        a(f"""
        v_and_b32 {v(t+10)}, 15, {v(VL)}
        v_lshrrev_b32 {v(t+11)}, 4, {v(VL)}
        v_lshlrev_b32 {v(t+2)}, 5, {v(t+10)}
        v_lshlrev_b32 {v(t+3)}, 3, {v(t+10)}
        v_add_u32 {v(t+3)}, 512, {v(t+3)}
        v_mul_u32_u24 {v(t+4)}, 640, {v(t+11)}
        s_mul_i32 s60, {s(S_W)}, 2560
        v_add3_u32 {v(t)}, {v(t+2)}, {v(t+4)}, s60
        v_add3_u32 {v(t+1)}, {v(t+3)}, {v(t+4)}, s60
        s_and_b32 s60, {s(S_W)}, 1
        s_mul_i32 s61, s60, 320
        v_min_u32 {v(t+4)}, 39, {v(VL)}
        v_lshl_add_u32 {v(t+4)}, {v(t+4)}, 3, s61
        s_mul_i32 s61, s60, 384
        v_lshl_add_u32 {v(t+5)}, {v(VL)}, 3, s61
        s_mul_i32 s60, {s(S_W)}, 5440
        s_add_u32 s60, s60, {L_BRED}
        v_mul_u32_u24 {v(t+6)}, 272, {v(t+10)}
        v_lshl_add_u32 {v(t+6)}, {v(t+11)}, 6, {v(t+6)}
        v_add_u32 {v(t+6)}, s60, {v(t+6)}
        v_lshrrev_b32 {v(t+7)}, 2, {v(t+10)}
        v_mul_u32_u24 {v(t+7)}, 272, {v(t+7)}
        v_lshl_add_u32 {v(t+7)}, {v(t+11)}, 6, {v(t+7)}
        v_and_b32 {v(t+8)}, 3, {v(VL)}
        v_lshl_add_u32 {v(t+7)}, {v(t+8)}, 2, {v(t+7)}
        v_add_u32 {v(t+7)}, s60, {v(t+7)}
        v_mul_u32_u24 {v(t+8)}, 272, {v(t+11)}
        v_lshl_add_u32 {v(t+8)}, {v(t+10)}, 4, {v(t+8)}
        v_add_u32 {v(t+8)}, s60, {v(t+8)}
        s_lshl_b32 s60, {s(S_TC)}, 2
        s_add_u32 s60, s60, {s(S_W)}
        s_mul_i32 s60, s60, {HREC}
        s_mul_i32 s61, {s(S_CG)}, {20*256}
        s_add_u32 s60, s60, s61
        s_add_u32 s60, s60, {WS_H}
        v_lshl_add_u32 {v(t+9)}, {v(VL)}, 4, s60
        """)
    def scan1(self):
        a = self.a; t = self.t; X = self.X
        A0, A1 = X, X + 12
        self.cfma5(A0, self.L1, self.U, self.U + 2, 8, 8)
        self.cfma5(A1, self.L1, A0, self.U + 4, 2, 8)
        self.cfma5(A0, self.L1, A1, self.U + 6, 2, 8)
        a(f"""
        ds_write_b128 {v(t)}, {v(A0,4)} offset:{L_AG}
        ds_write_b128 {v(t)}, {v(A0+4,4)} offset:{L_AG+16}
        ds_write_b64 {v(t+1)}, {v(A0+8,2)} offset:{L_AG}
        """)
        self.bar()
    def serial(self):
        a = self.a; t = self.t; X = self.X; Y = self.Y
        lb = a.label("lookback"); d1 = a.label("ser1"); d2 = a.label("ser2"); d3 = a.label("ser3")
        ms = opt("msleep", 4)
        a(f"""
        s_mul_i32 s62, {s(S_CG)}, {64*FSTR}
        s_add_u32 s62, s62, {FL_AGG}
        s_mul_i32 s63, {s(S_CG)}, 24576
        s_add_u32 s63, s63, {WS_AGG}
        v_mov_b32 {v(t+12)}, 0
        v_mov_b32 {v(t+13)}, 0
        s_cmp_ge_u32 {s(S_W)}, 2
        s_cbranch_scc1 {lb}
        """)
        for sg in range(16):
            a(f"ds_read_b64 {v(X+2*sg,2)}, {v(t+4)} offset:{L_AG + 640*sg}")
        a("s_waitcnt lgkmcnt(0)")
        for sg in range(1, 16):
            self.cfma(X+2*sg, self.LS, X+2*sg-2, X+2*sg)
        a(f"""
        s_sub_u32 s61, 31, {s(S_TC)}
        s_mul_i32 s61, s61, 768
        s_add_u32 s61, s61, s63
        s_mov_b32 exec_hi, 0xffff
        buffer_store_dwordx2 {v(X+30,2)}, {v(t+5)}, {s(SW,4)}, s61 offen sc1
        s_mov_b32 exec_hi, -1
        s_lshl_b32 s61, {s(S_TC)}, 1
        s_add_u32 s61, s61, {s(S_W)}
        s_mul_i32 s61, s61, {FSTR}
        s_add_u32 s62, s62, s61
        ds_write_b64 {v(t+4)}, {v(t+12,2)} offset:{L_AG}
        """)
        for sg in range(15):
            a(f"ds_write_b64 {v(t+4)}, {v(X+2*sg,2)} offset:{L_AG + 640*(sg+1)}")
        a("s_waitcnt vmcnt(0)")
        set_flag(a, 62, t + 14)
        if opt("warm", 1): self.warm()
        a(f"s_branch {d1}\n{lb}:")
        if opt("warm", 1): self.warm()
        a(f"""
        s_cmp_eq_u32 {s(S_TC)}, 0
        s_cbranch_scc1 {d1}
        s_cmp_eq_u32 {s(S_W)}, 3
        s_cbranch_scc1 {d1}
        s_lshl_b32 s61, {s(S_TC)}, 1
        s_sub_u32 s61, s61, 1
        v_min_u32 {v(t+14)}, s61, {v(VL)}
        v_mul_u32_u24 {v(t+14)}, {FSTR}, {v(t+14)}
        v_add_u32 {v(t+14)}, s62, {v(t+14)}
        """)
        poll(a, t + 14, t + 15, sleep=ms)
        a(f"{d1}:")
        self.bar(sleep=ms)
        stamp(a, 11)
        a(f"""
        s_add_u32 s52, {s(P_WS)}, s63
        s_addc_u32 s53, {s(P_WS+1)}, 0
        s_mov_b32 s54, 24576
        s_mov_b32 s55, 0x00020000
        s_lshr_b32 s61, {s(S_W)}, 1
        s_lshl_b32 s61, s61, 4
        s_add_u32 s61, s61, 32
        s_sub_u32 s61, s61, {s(S_TC)}
        s_mul_i32 s61, s61, 768
        v_add_u32 {v(t+12)}, s61, {v(t+5)}
        v_add_u32 {v(t+13)}, 3072, {v(t+12)}
        v_add_u32 {v(t+14)}, 6144, {v(t+12)}
        v_add_u32 {v(t+15)}, 9216, {v(t+12)}
        s_mov_b32 exec_hi, 0xff
        """)
        order = [j for k in range(7, -1, -1) for j in (8 + k, k)]
        for n, j in enumerate(order):
            if n >= 8: a("s_waitcnt vmcnt(7)")
            a(f"buffer_load_dwordx2 {v(Y+2*j,2)}, {v(t+12+j//4)}, s[52:55], 0 offen offset:{768*(j%4)} sc1")
        a("s_mov_b32 exec_hi, -1")
        self.craw_load()
        a("s_waitcnt vmcnt(3)")
        L64, L512, L1024 = self.LS + 2, self.LS + 4, self.LS + 6
        for k in range(6, -1, -1):
            for j in (8 + k, k): a(self.cf1(Y + 2*j, L64, Y + 2*j + 2, Y + 2*j))
            for j in (8 + k, k): a(self.cf2(Y + 2*j, L64, Y + 2*j + 2))
        self.cfma(Y, L512, Y + 16, Y)
        a(f"""
        s_cmp_lt_u32 {s(S_W)}, 2
        s_mov_b32 exec_hi, 0xff
        s_cbranch_scc0 {d2}
        ds_write_b64 {v(t+4)}, {v(Y,2)} offset:{L_CIN}
        s_branch {d3}
        {d2}:
        v_pk_mul_f32 {v(Y+2,2)}, {v(Y,2)}, {v(L1024,2)} op_sel:[0,0] op_sel_hi:[1,0]
        {self.cf2(Y + 2, L1024, Y)}
        ds_write_b64 {v(t+4)}, {v(Y+2,2)} offset:{L_CIN + 640}
        {d3}:
        s_mov_b32 exec_hi, -1
        """)
        self.bar(sleep=1)
    def scan2(self):
        a = self.a; t = self.t; X = self.X
        PRE, CI, H0, H1 = X, X + 12, X + 24, X
        P = self.Y
        a(f"""
        ds_read_b128 {v(PRE,4)}, {v(t)} offset:{L_AG}
        ds_read_b128 {v(PRE+4,4)}, {v(t)} offset:{L_AG+16}
        ds_read_b64 {v(PRE+8,2)}, {v(t+1)} offset:{L_AG}
        ds_read_b128 {v(CI,4)}, {v(t+2)} offset:{L_CIN}
        ds_read_b128 {v(CI+4,4)}, {v(t+2)} offset:{L_CIN+16}
        ds_read_b64 {v(CI+8,2)}, {v(t+3)} offset:{L_CIN}
        ds_read_b128 {v(H0,4)}, {v(t+2)} offset:{L_CIN+640}
        ds_read_b128 {v(H0+4,4)}, {v(t+2)} offset:{L_CIN+640+16}
        ds_read_b64 {v(H0+8,2)}, {v(t+3)} offset:{L_CIN+640}
        s_waitcnt lgkmcnt(0)
        """)
        for g in range(5): a(f"v_pk_add_f32 {v(CI+2*g,2)}, {v(CI+2*g,2)}, {v(H0+2*g,2)}")
        self.cfma5(H0, self.LP, CI, PRE)
        src, dst = H0, H1
        for r in range(4):
            self.cfma5(dst, self.L1, src, self.U + 2*r, 2, 8)
            for g in range(5):
                p = P + 4 * r + g if g < 4 else P + 16 + r
                a(f"v_cvt_pk_bf16_f32 {v(p)}, {v(dst+2*g)}, {v(dst+2*g+1)}")
            a(f"ds_write_b128 {v(t+6)}, {v(P+4*r,4)} offset:{16*r}")
            a(f"ds_write_b32 {v(t+7)}, {v(P+16+r)} offset:{16*272 + 16*r}")
            src, dst = dst, src
        Z = self.Y + 20
        for i in range(5):
            a(f"ds_read_b128 {v(Z+4*i,4)}, {v(t+8)} offset:{4*272*i}")
        a("s_waitcnt vmcnt(0)")
        self.bar.arrive()
        a("s_movk_i32 s60, 0x1000")
        for i in range(5):
            a(f"s_waitcnt lgkmcnt({5-i})")
            a(f"buffer_store_dwordx4 {v(Z+4*i,4)}, {v(t+9)}, {s(SW,4)}, {'0' if i < 4 else 's60'} offen offset:{1024*(i%4)} sc1")

class B2:
    NR = 4
    def __init__(self, a, bar):
        self.a = a; self.bar = bar
        R = Regs(8)
        self.vc = R.alloc("vc", 9)
        self.wo = R.alloc("wo", 5)
        self.pa = R.alloc("pa", 1)
        assert R.next <= 24
        R.next = 28
        self.acc = R.alloc("acc", 80, 4)
        self.F = [R.alloc(f"F{i}", 36, 4) for i in range(self.NR)]
        self.t = 8
        self.SO, self.ST, self.SWO = 48, 52, 48
    def setup(self):
        a = self.a; vc = self.vc
        a(f"""
        s_mul_i32 s60, {s(S_W)}, {40*256}
        s_mul_i32 s61, {s(S_CG)}, {5*HREC}
        s_add_u32 s61, s61, s60
        s_add_u32 s61, s61, {WS_C}
        v_lshl_add_u32 {v(vc)}, {v(VL)}, 4, s61
        s_mul_i32 s61, {s(S_TC)}, {4*HREC}
        s_add_u32 s61, s61, s60
        s_add_u32 s61, s61, {WS_H}
        v_lshl_add_u32 {v(vc+5)}, {v(VL)}, 4, s61
        """)
        for i in range(1, 5): a(f"v_add_u32 {v(vc+i)}, {i*HREC}, {v(vc)}")
        for i in range(1, 4): a(f"v_add_u32 {v(vc+5+i)}, {i*HREC}, {v(vc+5)}")
    def poll_addr(self):
        a = self.a; t = self.pa
        a(f"""
        s_mul_i32 s60, {s(S_CG)}, {32*FSTR}
        s_add_u32 s60, s60, {FL_H}
        v_mul_u32_u24 {v(t)}, {FSTR}, {v(VL)}
        v_add_u32 {v(t)}, s60, {v(t)}
        s_mul_i32 s60, {s(S_TC)}, {8*FSTR}
        s_add_u32 s60, s60, {FL_H}
        v_and_b32 v6, 7, {v(VL)}
        v_mul_u32_u24 v6, {FSTR}, v6
        v_cmp_gt_u32 vcc, 32, {v(VL)}
        v_add_u32 v6, s60, v6
        s_nop 0
        v_cndmask_b32 {v(t)}, v6, {v(t)}, vcc
        """)
    def poll(self):
        a = self.a; sk = a.label("nopb")
        a(f"s_cmp_lg_u32 {s(S_W)}, 1\ns_cbranch_scc1 {sk}")
        poll(a, self.pa, 6, sleep=opt("msleep", 4))
        a(f"{sk}:\ns_waitcnt vmcnt(0)")
    def ld(self, step):
        F = self.F[step % self.NR]
        out = ["s_lshl_b32 s60, s40, 10"]
        out += [f"buffer_load_dwordx4 {v(F+4*i,4)}, {v(self.vc+i)}, {s(SW,4)}, s60 offen sc1" for i in range(9)]
        out += ["s_add_u32 s40, s40, 1\ns_cmp_eq_u32 s40, 10\ns_cselect_b32 s40, 0, s40"]
        return out
    def wo_group(self, g):
        vo = self.wo; S = s(self.SWO, 4)
        out = [f"s_add_u32 m0, s63, {L_WO + g*20480}\ns_nop 0"]
        out += [f"buffer_load_dwordx4 {v(vo+i)}, {S}, s62 offen offset:{1024*i} lds" for i in range(4)]
        out += [f"s_add_u32 m0, s63, {L_WO + g*20480 + 4096}\ns_nop 0", f"buffer_load_dwordx4 {v(vo+4)}, {S}, s62 offen lds", f"s_add_u32 s62, s62, {128*1280}"]
        return out
    def wo_setup(self):
        self.a(f"""
        s_lshr_b32 s62, s2, 5
        s_mul_i32 s62, s62, 160
        s_mul_i32 s63, {s(S_W)}, {32*1280}
        s_add_u32 s62, s62, s63
        s_mul_i32 s63, {s(S_W)}, 5120
        """)
    def wo_paced(self, groups):
        a = self.a; W = opt("wwin", 3)
        for g in groups:
            for x in self.wo_group(g):
                if x.startswith("buffer"): a(f"s_waitcnt vmcnt({W-1})")
                a(x)
    def gemm(self, gate_fn):
        a = self.a; NR = self.NR; U = opt("ungated", 6); W = [opt("win", 6)]
        pend = []
        for st in range(10):
            g = opt("wo1", 2) + st - 2
            if st >= 2 and g < 4: pend += [(st, x) for x in self.wo_group(g)]
            pend += [(st, x) for x in self.ld(st)]
        wo_done = max(0, 5 - opt("wo1", 2)) if opt("wo1", 2) < 4 else 0
        if U <= wo_done:
            wo_done = -1; g0 = gate_fn
            def gate_fn():
                a("s_waitcnt vmcnt(0)\ns_setprio 3"); self.bar.arrive(); self.G_WO = self.bar.n; a(f"s_setprio {opt('gprio2', 0)}"); g0()
        cnt = [0]; done = {}
        def emit(limit):
            while pend and pend[0][0] <= limit:
                st, x = pend.pop(0)
                if x.startswith("buffer"):
                    if W[0] < 40: a(f"s_waitcnt vmcnt({W[0]-1})")
                    a(x); cnt[0] += 1; done[st] = cnt[0]
                    return True
                a(x)
            return False
        for st in range(10):
            while emit(st): pass
            if st == U:
                while emit(st + NR - 1): pass
                gate_fn()
                W[0] = opt("win2", 9)
            a(f"s_waitcnt vmcnt({cnt[0] - done[st]})")
            if st == wo_done:
                a("s_setprio 3"); self.bar.arrive(); self.G_WO = self.bar.n; a(f"s_setprio {opt('gprio2', 0)}")
            F = self.F[st % NR]; n = 0
            for tt in range(4):
                for i in (range(5) if tt % 2 == 0 else range(4, -1, -1)):
                    d = self.acc + 20 * tt + 4 * i
                    a(f"v_mfma_f32_16x16x32_bf16 {v(d,4)}, {v(F+4*i,4)}, {v(F+20+4*tt,4)}, {'0' if st == 0 else v(d,4)}")
                    n += 1
                    if n % 3: emit(st + NR - 1)
    def epi(self):
        a = self.a; t = self.t; acc = self.acc
        E = self.F[2]; Z = self.F[0]
        a.srd(self.ST, P_BX, 2048 * 1280)
        a.srd(self.SO, P_DSK, 1280)
        a(f"""
        s_lshl_b32 s60, {s(S_TC)}, 2
        s_add_u32 s60, s60, {s(S_W)}
        s_mul_i32 s61, s60, {16*1280}
        s_mul_i32 s62, {s(S_CG)}, 160
        s_add_u32 s61, s61, s62
        s_mul_i32 s63, s60, {16*5120}
        s_lshl_b32 s6, s62, 1
        s_add_u32 s63, s63, s6
        s_add_u32 s63, s63, 2560
        v_and_b32 {v(t)}, 15, {v(VL)}
        v_lshrrev_b32 {v(t+1)}, 4, {v(VL)}
        v_lshlrev_b32 {v(t+2)}, 3, {v(t+1)}
        v_mul_u32_u24 {v(t+3)}, 1280, {v(t)}
        v_add_u32 {v(t+3)}, {v(t+3)}, {v(t+2)}
        """)
        for i in range(5):
            a(f"buffer_load_dwordx2 {v(E+2*i,2)}, {v(t+3)}, {s(self.ST,4)}, s61 offen offset:{32*i}")
            a(f"buffer_load_dwordx2 {v(E+10+2*i,2)}, {v(t+2)}, {s(self.SO,4)}, s62 offen offset:{32*i}")
        a.srd(self.SO, P_OUT, 2048 * 5120)
        l1 = a.label("b2a"); l2 = a.label("b2b"); l3 = a.label("b2c"); l4 = a.label("b2d")
        a(f"""
        v_mul_u32_u24 {v(t+3)}, 5120, {v(t)}
        v_lshl_add_u32 {v(t+3)}, {v(t+1)}, 4, {v(t+3)}
        s_mul_i32 s60, {s(S_W)}, 10240
        s_add_u32 s60, s60, {L_BRED}
        v_lshl_add_u32 {v(t)}, {v(VL)}, 4, s60
        s_xor_b32 s60, {s(S_W)}, 1
        s_mul_i32 s60, s60, 10240
        s_add_u32 s60, s60, {L_BRED}
        v_lshl_add_u32 {v(t+1)}, {v(VL)}, 4, s60
        s_xor_b32 s60, {s(S_W)}, 3
        s_mul_i32 s60, s60, 10240
        s_add_u32 s60, s60, {L_BRED}
        v_lshl_add_u32 {v(t+2)}, {v(VL)}, 4, s60
        s_bitcmp1_b32 {s(S_W)}, 0
        s_cbranch_scc1 {l1}
        """)
        for par in range(2):
            if par: a(f"{l1}:")
            for u in range(2):
                for i in range(5):
                    a(f"ds_write_b128 {v(t)}, {v(acc + 20*(2*u + 1 - par) + 4*i,4)} offset:{1024*(5*u+i)}")
            self.bar(count=(par == 0))
            for k in range(10):
                a(f"ds_read_b128 {v(Z+4*k,4)}, {v(t+1)} offset:{1024*k}")
            for k in range(10):
                u, i = divmod(k, 5)
                a(f"s_waitcnt lgkmcnt({9-k})")
                for r in (0, 2):
                    a(f"v_pk_add_f32 {v(Z+4*k+r,2)}, {v(Z+4*k+r,2)}, {v(acc + 20*(2*u + par) + 4*i + r,2)}")
            if not par: a(f"s_branch {l2}")
        a(f"{l2}:\ns_bitcmp1_b32 {s(S_W)}, 1\ns_cbranch_scc1 {l3}")
        for hi in range(2):
            if hi: a(f"{l3}:")
            for i in range(5):
                a(f"ds_write_b128 {v(t+1)}, {v(Z + 20*(1-hi) + 4*i,4)} offset:{1024*i}")
            self.bar(count=(hi == 0))
            for i in range(5):
                a(f"ds_read_b128 {v(acc+4*i,4)}, {v(t+2)} offset:{1024*i}")
            a("s_waitcnt vmcnt(0)")
            for i in range(5):
                for r in (0, 2):
                    x = E + 2 * i + (r >> 1); d = x + 10
                    a(f"v_lshlrev_b32 {v(t+4)}, 16, {v(x)}\nv_and_b32 {v(t+5)}, 0xffff0000, {v(x)}")
                    a(f"v_lshlrev_b32 {v(t+6)}, 16, {v(d)}\nv_and_b32 {v(t+7)}, 0xffff0000, {v(d)}")
                    a(f"v_pk_fma_f32 {v(Z+20*hi+4*i+r,2)}, {v(t+4,2)}, {v(t+6,2)}, {v(Z+20*hi+4*i+r,2)}")
                a(f"s_waitcnt lgkmcnt({4-i})")
                for r in (0, 2):
                    a(f"v_pk_add_f32 {v(acc+4*i+r,2)}, {v(acc+4*i+r,2)}, {v(Z+20*hi+4*i+r,2)}")
                a(f"buffer_store_dwordx4 {v(acc+4*i,4)}, {v(t+3)}, {s(self.SO,4)}, s63 offen offset:{64*i} {OPT.get('ob','').replace('+',' ')}")
            if not hi: a(f"s_branch {l4}")
        a(f"{l4}:")
```

```python
import sys
from fcommon import *
from fl import *
from fm import *
NAME = "concat_heads__mha_block__ssm_conv_s5__prompt_kernel"
S_IDLE = 66
def role_m(a):
    bar = SwBar(a)
    m = MRegs()
    A = A1(a, m); B = B1(a, bar, m); C = B2(a, bar)
    swbar_setup(a, 1)
    a(f"v_and_b32 v6, 31, {v(VL)}\nv_lshlrev_b32 v6, 2, v6\nds_write_b32 v6, {v(VGEN)} offset:{L_BAR}")
    if opt("codepf", 0):
        a(f"""
        s_cmp_lg_u32 {s(S_W)}, 0
        s_cbranch_scc1 Lnopf
        s_getpc_b64 s[60:61]
        Lpc:
        s_add_u32 s60, s60, {NAME}-Lpc
        s_addc_u32 s61, s61, -1
        s_lshr_b32 s62, s2, 3
        s_lshl_b32 s62, s62, 4
        v_and_b32 v6, 15, {v(VL)}
        v_add_u32 v6, s62, v6
        v_lshlrev_b32 v6, 7, v6
        v_min_u32 v6, Lcode_end-{NAME}-4, v6
        v_mov_b32 v7, s61
        v_add_co_u32 v6, vcc, s60, v6
        s_nop 1
        v_addc_co_u32 v7, vcc, 0, v7, vcc
        global_load_dword v255, v[6:7], off
        Lnopf:
        """)
    a("s_waitcnt lgkmcnt(0)")
    B.params_load()
    a.srd(SW, P_WS, WS_END); a.srd(SD, P_DBG, 256)
    A.setup(); B.gemm_setup(); B.cprep_addr(); B.scan_setup(); B.craw_addr()
    wo_addr(a, C.wo, m.F, C.SWO); C.setup(); C.poll_addr()
    a("s_waitcnt vmcnt(0)")
    B.params1()
    a(f"""
    s_lshl_b32 s41, {s(S_I1)}, 4
    s_add_u32 s41, s41, {s(S_I0)}
    s_mul_i32 s41, s41, {FSTR}
    s_add_u32 s41, s41, {FL_QKV}
    s_cmp_ge_u32 {s(S_I1)}, 10
    s_cselect_b32 s65, 1, 0
    s_cmp_lg_u32 {s(S_IDLE)}, 0
    s_cselect_b32 s65, 2, s65
    s_waitcnt lgkmcnt(0)
    s_cbranch_scc1 Lidle
    s_cmp_ge_u32 {s(S_I1)}, 10
    s_cbranch_scc1 Lvtile
    """)
    A.loop(0); stamp(a, 2)
    n = A.epilogue(0)
    a(f"s_waitcnt vmcnt({n})\ns_branch Lafter")
    a("Lidle:")
    for i in range(11): a("s_barrier")
    nonce_load(a, A.nn)
    stamp(a, 1); stamp(a, 2)
    a("s_waitcnt vmcnt(0)\ns_branch Lafter")
    a("Lvtile:")
    A.loop(1); stamp(a, 2)
    n = A.epilogue(1)
    a(f"s_waitcnt vmcnt({n})")
    a("Lafter:")
    nonce_finish(a, A.nn)
    def flag():
        stamp(a, 3)
        set_flag(a, 41, 6)
    a(f"s_mov_b32 s64, {s(S_IDLE)}\ns_setprio {opt('gprio', 3)}")
    ex = {0: [B.params2_read]}
    for g in range(5): ex[1 + 2 * g] = [lambda g=g: B.params2(g)]
    nt = len(A.stores[1]); sp = opt("stp", 2)
    for k in range(nt): ex.setdefault(sp * k, []).insert(0, lambda k=k: A.trickle(k))
    B.gemm(flag, ex, max(2, sp * (nt - 1) + 3))
    stamp(a, 4)
    a("s_setprio 3")
    def mexit(k):
        if opt("mexit") == k:
            a(f"v_mov_b32 {v(VGEN)}, 60\nds_write_b32 {v(VBW)}, {v(VGEN)}\ns_waitcnt lgkmcnt(0)\ns_endpgm")
    mexit(1)
    B.exchange()
    B.scan1()
    B.serial()
    stamp(a, 5)
    B.scan2()
    B.cprep_calc()
    a(f"""
    s_lshl_b32 s41, {s(S_TC)}, 3
    s_add_u32 s41, s41, {s(S_CG)}
    s_mul_i32 s41, s41, {FSTR}
    s_add_u32 s41, s41, {FL_H}
    """)
    C.wo_setup()
    a("s_waitcnt vmcnt(0)")
    bar(sleep=2)
    set_flag(a, 41, 6, only_wave=0)
    stamp(a, 6)
    a("s_setprio 0")
    C.wo_paced(range(opt("wo1", 2)))
    a("s_setprio 3")
    C.poll()
    bar(sleep=2)
    mexit(2)
    a(f"s_setprio {opt('gprio2', 0)}")
    def gate():
        stamp(a, 7)
        lds_wait(a, "1", off=16, sleep=opt("gsleep", 4), addr=VBW)
    C.gemm(gate)
    a(f"s_setprio {opt('eprio', 0)}")
    stamp(a, 8)
    mexit(3)
    C.epi()
    stamp(a, 9)
    if STAMPS: a("s_waitcnt vmcnt(0)")
    stamp(a, 10); stamp_dump(a, range(0, 12))
    a("s_endpgm")
    return C.G_WO
def role_l(a, G_WO):
    bar = SwBar(a)
    T = A2(a, bar)
    L = Loader(a, T.S[0])
    def IDLEPF():
        if opt("idlepf", 8):
            n = opt("idlepf", 8); D = T.S[2]
            a(f"""
            s_cmp_eq_u32 {s(S_IDLE)}, 0
            s_cbranch_scc1 Lnoipf
            s_bfe_u32 s60, s2, 0x10003
            s_lshl_b32 s60, s60, 2
            s_add_u32 s60, s60, {s(S_W)}
            s_and_b32 s61, s2, 7
            v_lshlrev_b32 v6, 7, {v(VL)}
            s_and_b32 s6, s61, 1
            s_lshl_b32 s6, s6, 2
            s_lshr_b32 s7, s61, 1
            s_add_u32 s6, s6, s7
            s_mul_i32 s6, s6, {80*1280}
            s_and_b32 s7, s60, 3
            s_mul_i32 s7, s7, {200*128}
            s_add_u32 s6, s6, s7
            s_cmp_lt_u32 s60, 4
            s_cselect_b32 s28, {s(P_BRE)}, {s(P_BIM)}
            s_cselect_b32 s29, {s(P_BRE+1)}, {s(P_BIM+1)}
            s_mov_b32 s30, {640*1280}
            s_mov_b32 s31, 0x00020000
            """)
            if opt("pfdelay"): a(f"s_sleep {opt('pfdelay')}")
            for i in range(3):
                a(f"buffer_load_dword {v(D+i)}, v6, s[28:31], s6 offen\ns_add_u32 s6, s6, 8192")
            a(f"s_mov_b64 exec, 0xff\nbuffer_load_dword {v(D+3)}, v6, s[28:31], s6 offen\ns_mov_b64 exec, -1")
            a(f"s_mul_i32 s6, s61, {256*1280}\ns_mul_i32 s7, s60, {5*8192}\ns_add_u32 s6, s6, s7")
            a.srd(28, P_BX, 2048 * 1280)
            for i in range(n - 4):
                a(f"buffer_load_dword {v(D+4+i)}, v6, s[28:31], s6 offen\ns_add_u32 s6, s6, 8192")
            a("Lnoipf:")
    L.ld_valu()
    a("s_waitcnt lgkmcnt(0)")
    L.ld_srd()
    seq = []; nxt = [0]
    def issue_half():
        st, h = divmod(nxt[0], 2)
        if nxt[0] == 20:
            a("Lli2:"); L.b1_srd()
        seq.extend([st] * L.half(st, h)); nxt[0] += 1
    a(f"s_cmp_lg_u32 {s(S_IDLE)}, 0\ns_cbranch_scc1 Lli0")
    for i in range(4): issue_half()
    a("Lli0:")
    stamp(a, 1)
    swbar_setup(a, 0)
    a.srd(SW, P_WS, WS_END); a.srd(SD, P_DBG, 256)
    a("s_cmp_lg_u32 s2, 255\ns_cbranch_scc1 Lnn")
    make_nonce(a, T.S[2], "Lnn")
    a("Lnn:")
    IDLEPF()
    L.b1_setup()
    a(f"""
    s_and_b32 {s(S_I0)}, s2, 7
    s_lshl_b32 {s(S_I0)}, {s(S_I0)}, 2
    s_bfe_u32 s6, s2, 0x20003
    s_add_u32 {s(S_I0)}, {s(S_I0)}, s6
    s_lshr_b32 {s(S_I1)}, s2, 5
    """)
    T.setup(); T.epi_setup(); T.poll_addr(); T.zero()
    a(f"s_cmp_eq_u32 {s(S_IDLE)}, 0\ns_cbranch_scc1 Lli1")
    mark = len(a.lines)
    stamp(a, 2)
    a("s_branch Lli2\nLli1:")
    NL = 12; Q0 = opt("q0", 3); nbar = 0
    def interval(free_upto, quota):
        n = 0
        while n < quota and nxt[0] < 40 and nxt[0] // 2 <= free_upto:
            if nxt[0] == 20: a.lines[mark:mark] = ["    s_barrier"] * nbar
            issue_half(); n += 1
    for st in range(20):
        if st == 10:
            a("s_barrier"); nbar += 1
            interval(9 + NRING, 2)
        k = len(seq) - 1 - seq[::-1].index(st)
        if st == NL + 3: k = max(k, seq.index("n"))
        a(f"s_waitcnt vmcnt({len(seq) - 1 - k if st < 19 else 0})")
        if opt("qst") == 2 and st >= 9: stamp(a, st - 8, True)
        if opt("qst") == 1 and 1 <= st <= 10: stamp(a, st + 1, True)
        if st == 19: break
        a("s_barrier"); nbar += 1
        if st == 0: stamp(a, 2)
        interval(st - 1 + NRING, 3 if st >= Q0 else 2)
        if st == NL: nonce_load(a, 6); seq.append("n")
        if st == NL + 3: nonce_finish(a, 6)
        if st == opt('p1', 17): T.poll_first()
    stamp(a, 3)
    a("s_setprio 2")
    T.poll_finish()
    stamp(a, 4)
    a("Lmain:")
    T.main()
    stamp(a, 6)
    lds_wait(a, str(G_WO), off=16)
    a("s_nop 4")
    T.reduce_store("Lretry")
    stamp(a, 7)
    a(f"""
    s_lshl_b32 s40, {s(S_I1)}, 5
    s_add_u32 s40, s40, {s(S_I0)}
    s_mul_i32 s40, s40, {FSTR}
    s_add_u32 s40, s40, {FL_O}
    """)
    set_flag(a, 40, 6, only_wave=0)
    wo_addr(a, 8, 14, 48)
    wo_load(a, 8, 48, S_I1, [4])
    P = A3(a)
    P.setup()
    P.pre()
    P.poll_o()
    bar()
    stamp(a, 8)
    P.load_o()
    P.compute()
    stamp(a, 9)
    if STAMPS: a("s_waitcnt vmcnt(0)")
    stamp(a, 10); stamp_dump(a, range(0, 12))
    a("Lend:\ns_endpgm")
    a("Lretry:")
    a(f"s_mov_b32 {s(T.sTry)}, 1")
    T.maxpass()
    T.zero()
    a("s_branch Lmain")
def gen():
    a = Asm()
    stamp(a, 0)
    a(f"""
    s_load_dwordx16 s[8:23], s[0:1], 0
    s_load_dwordx8 s[24:31], s[0:1], 64
    s_load_dwordx4 s[32:35], s[0:1], 96
    s_load_dwordx2 s[36:37], s[0:1], 112
    s_cmp_ge_u32 s2, 256
    s_cbranch_scc1 Lend
    v_lshrrev_b32 v2, 6, v0
    v_and_b32 {v(VL)}, 63, v0
    v_readfirstlane_b32 {s(S_WAVE)}, v2
    s_lshr_b32 s40, s2, 3
    s_cmp_ge_u32 s40, 30
    s_cselect_b32 {s(S_IDLE)}, 1, 0
    s_and_b32 s41, s2, 1
    s_mul_i32 s6, s41, 30
    s_add_u32 s40, s40, s6
    s_lshr_b32 {s(S_I1)}, s40, 2
    s_and_b32 s40, s40, 3
    s_bfe_u32 s6, s2, 0x20001
    s_lshl_b32 s7, s6, 2
    s_add_u32 {s(S_I0)}, s40, s7
    s_lshl_b32 s6, s6, 3
    s_bfe_u32 s7, s2, 0x30003
    s_add_u32 {s(S_TC)}, s6, s7
    s_lshl_b32 s41, s41, 2
    s_bfe_u32 s7, s2, 0x20006
    s_add_u32 {s(S_CG)}, s41, s7
    s_and_b32 {s(S_W)}, {s(S_WAVE)}, 3
    s_cmp_lt_u32 {s(S_WAVE)}, 4
    s_cbranch_scc1 LroleM
    """)
    am = Asm(); am.uid = 5000
    G = role_m(am)
    role_l(a, G)
    a(".p2align 6\nLroleM:")
    a.lines += am.lines
    a("Lcode_end:")
    head = open("concat_heads__mha_block__ssm_conv_s5__prompt.s.ref").read().split("; Override launch")[0]
    return (head + f"; @launch grid=(256,1,1) block=(512,1,1) lds={LDS_TOTAL}\n" + '.amdgcn_target "amdgcn-amd-amdhsa--gfx950"\n'
            + kernel_header(NAME) + a.text() + kernel_desc(NAME, 256, 102))
if __name__ == "__main__":
    open(sys.argv[1], "w").write(gen())
```

```python
from fcommon import *
S_TC, S_CG, S_I0, S_I1 = 38, 39, 42, 43

class Loader:
    def __init__(self, a, base, vb, t):
        self.a = a
        self.vx = base; self.vw = base + 4; self.vb = vb; self.t = t
        self.SX, self.SB = 52, 56
    def ld_valu(self):
        a = self.a; t = self.t; vx = self.vx; vw = self.vw
        a(f"""
        v_lshrrev_b32 {v(t)}, 3, {v(VL)}
        v_mul_u32_u24 {v(t)}, 1280, {v(t)}
        v_lshrrev_b32 {v(t+1)}, 4, {v(VL)}
        v_and_b32 {v(t+2)}, 7, {v(VL)}
        v_xor_b32 {v(t+2)}, {v(t+2)}, {v(t+1)}
        v_lshl_add_u32 {v(t+3)}, {v(t+2)}, 4, {v(t)}
        s_lshl_b32 s60, {s(S_I0)}, 2
        s_add_u32 s60, s60, {s(S_W)}
        s_mul_i32 s60, s60, {32*1280}
        v_add_u32 {v(vx)}, s60, {v(t+3)}
        v_xor_b32 {v(vx+1)}, 64, {v(vx)}
        v_add_u32 {v(vx+2)}, {2*(8*1280-1024)}, {v(vx)}
        v_add_u32 {v(vx+3)}, {3*(8*1280-1024)}, {v(vx+1)}
        v_add_u32 {v(vx+1)}, {1*(8*1280-1024)}, {v(vx+1)}
        v_mul_u32_u24 {v(t)}, 3840, {v(t+1)}
        v_lshlrev_b32 {v(t+1)}, 1, {v(t+1)}
        v_and_b32 {v(t+2)}, 15, {v(VL)}
        v_xor_b32 {v(t+2)}, {v(t+2)}, {v(t+1)}
        v_lshl_add_u32 {v(t+3)}, {v(t+2)}, 4, {v(t)}
        s_mul_i32 s60, {s(S_W)}, {16*3840}
        s_lshl_b32 s61, {s(S_I1)}, 8
        s_add_u32 s60, s60, s61
        v_add_u32 {v(vw)}, s60, {v(t+3)}
        v_xor_b32 {v(vw+2)}, 0x80, {v(vw)}
        v_add_u32 {v(vw+1)}, {1*(4*3840-1024)}, {v(vw)}
        v_add_u32 {v(vw+3)}, {3*(4*3840-1024)}, {v(vw+2)}
        v_add_u32 {v(vw+2)}, {2*(4*3840-1024)}, {v(vw+2)}
        s_and_b32 s62, {s(S_I0)}, 3
        s_mul_i32 s62, s62, 3
        s_add_u32 s62, s62, {s(S_I1)}
        s_mul_i32 s60, s62, 205
        s_lshr_b32 s60, s60, 11
        s_mul_i32 s60, s60, 10
        s_sub_u32 s62, s62, s60
        s_lshl_b32 s63, {s(S_W)}, 12
        """)
        if opt("rot7", 1):
            a(f"""
            s_lshl_b32 s60, {s(S_I1)}, 2
            s_and_b32 s61, {s(S_I0)}, 3
            s_add_u32 s60, s60, s61
            s_cmp_eq_u32 s60, 29
            s_cselect_b32 s62, 2, s62
            s_cmp_eq_u32 s60, 30
            s_cselect_b32 s62, 1, s62
            """)
        if opt("norot"): a("s_mov_b32 s62, 0")
        if opt("rot") == 2: a(f"s_add_u32 s62, {s(S_I0)}, {s(S_I1)}\ns_and_b32 s62, s62, 1\ns_mul_i32 s62, s62, 5")
        if opt("rot") == 4: a(f"s_add_u32 s62, {s(S_I0)}, {s(S_I1)}\ns_and_b32 s62, s62, 3\ns_mul_i32 s62, s62, 5\ns_lshr_b32 s62, s62, 1")
        if opt("rot") == 5: a(f"s_add_u32 s62, {s(S_I0)}, {s(S_I1)}\ns_and_b32 s62, s62, 3")
    def ld_srd(self):
        a = self.a
        a.srd(self.SX, P_AX, 2048 * 1280); a.srd(self.SB, P_WQKV, 640 * 3840)
        a("s_mov_b32 s16, s62\ns_mov_b32 s17, s63")
    def half(self, st, h):
        a = self.a; base = L_RING + (st % NRING) * 32768; vb = self.vb
        if st < 10 and h == 0:
            a(f"s_add_u32 m0, s17, {base}\ns_lshl_b32 s6, s16, 7")
            for i in range(4): a(f"buffer_load_dwordx4 {v(self.vx+i)}, {s(self.SX,4)}, s6 offen offset:{1024*i} lds")
            return 4
        if st < 10:
            a(f"s_add_u32 m0, s17, {base+16384}\ns_mul_i32 s6, s16, {64*3840}")
            for i in range(4): a(f"buffer_load_dwordx4 {v(self.vw+i)}, {s(self.SB,4)}, s6 offen offset:{1024*i} lds")
            a("s_add_u32 s16, s16, 1\ns_cmp_eq_u32 s16, 10\ns_cselect_b32 s16, 0, s16")
            return 4
        if h == 0:
            a(f"s_add_u32 m0, s41, {base}\ns_lshl_b32 s6, s40, 7")
            for g in range(4): a(f"buffer_load_dwordx4 {v(vb+g)}, {s(self.SB,4)}, s6 offen offset:{1024*g} lds")
            return 4
        a(f"s_add_u32 m0, s41, {base+4096}\ns_lshl_b32 s6, s40, 7")
        a(f"buffer_load_dwordx4 {v(vb+4)}, {s(self.SB,4)}, s6 offen lds")
        a(f"s_add_u32 m0, s41, {base+5120}\ns_add_u32 s40, s40, 1")
        a(f"buffer_load_dwordx4 {v(vb+5)}, {s(self.SX,4)}, s6 offen lds")
        a(f"buffer_load_dwordx4 {v(vb+6)}, {s(self.SX,4)}, s6 offen offset:1024 lds")
        a("s_cmp_eq_u32 s40, 10\ns_cselect_b32 s40, 0, s40")
        return 3
    def b1_setup(self):
        a = self.a; t = self.t; vb = self.vb
        a(f"""
        s_and_b32 s60, {s(S_W)}, 1
        s_lshr_b32 s61, {s(S_W)}, 1
        v_lshrrev_b32 {v(t)}, 3, {v(VL)}
        v_lshrrev_b32 {v(t+1)}, 4, {v(VL)}
        v_and_b32 {v(t+2)}, 7, {v(VL)}
        v_xor_b32 {v(t+2)}, {v(t+2)}, {v(t+1)}
        v_lshlrev_b32 {v(t+2)}, 4, {v(t+2)}
        s_lshl_b32 s6, s61, 6
        v_xor_b32 {v(t+3)}, s6, {v(t+2)}
        s_lshl_b32 s6, s61, 3
        v_add_u32 {v(t+8)}, s6, {v(t)}
        s_mul_i32 s6, {s(S_CG)}, {80*1280}
        v_add_u32 {v(t+3)}, s6, {v(t+3)}
        v_mul_u32_u24 {v(t+5)}, {4*1280}, {v(t+8)}
        v_add_u32 {v(vb)}, {v(t+5)}, {v(t+3)}
        v_add_u32 {v(vb+1)}, {1*(1280-1024)}, {v(vb)}
        v_add_u32 {v(vb+2)}, {2*(1280-1024)}, {v(vb)}
        v_add_u32 {v(vb+3)}, {3*(1280-1024)}, {v(vb)}
        v_mul_u32_u24 {v(t+5)}, 1280, {v(t+8)}
        v_add_u32 {v(t+5)}, {64*1280}, {v(t+5)}
        v_add_u32 {v(vb+4)}, {v(t+5)}, {v(t+3)}
        s_lshl_b32 s6, {s(S_TC)}, 2
        s_add_u32 s6, s6, {s(S_W)}
        s_mul_i32 s6, s6, {16*1280}
        v_mul_u32_u24 {v(t+5)}, 1280, {v(t)}
        v_add3_u32 {v(vb+5)}, {v(t+5)}, {v(t+2)}, s6
        v_xor_b32 {v(vb+6)}, 64, {v(vb+5)}
        v_add_u32 {v(vb+6)}, {8*1280-1024}, {v(vb+6)}
        s_lshl_b32 s41, s60, 1
        s_add_u32 s41, s41, s61
        s_mul_i32 s41, s41, 7168
        s_and_b32 s40, {s(S_CG)}, 3
        s_mul_i32 s40, s40, 3
        s_and_b32 s6, {s(S_TC)}, 7
        s_add_u32 s40, s40, s6
        s_sub_u32 s6, s40, 10
        s_cmp_ge_u32 s40, 10
        s_cselect_b32 s40, s6, s40
        """)
    def b1_srd(self):
        a = self.a
        a.srd(self.SX, P_BX, 2048 * 1280)
        a(f"""
        s_bitcmp0_b32 {s(S_W)}, 0
        s_cselect_b32 {s(self.SB)}, {s(P_BRE)}, {s(P_BIM)}
        s_cselect_b32 {s(self.SB+1)}, {s(P_BRE+1)}, {s(P_BIM+1)}
        s_mov_b32 {s(self.SB+2)}, {640*1280}
        s_mov_b32 {s(self.SB+3)}, 0x00020000
        """)

NSL = opt('nsl', 4)
class A2:
    def __init__(self, a, bar):
        self.a = a; self.bar = bar
        R = Regs(8)
        self.vK0 = R.alloc("vK0"); self.vK1 = R.alloc("vK1"); self.vV0 = R.alloc("vV0"); self.vV1 = R.alloc("vV1")
        self.idx = R.alloc("idx")
        self.wo = R.alloc("wo", 1); R.next += 6
        self.Q = [R.alloc(f"Q{b}", 6) for b in range(4)]
        self.K = [R.alloc(f"K{i}", 6) for i in range(NSL)]
        self.V = [R.alloc(f"V{i}", 8) for i in range(NSL)]
        self.S = [R.alloc(f"S{b}", 16) for b in range(4)]
        self.O = [R.alloc(f"O{b}", 16) for b in range(4)]
        self.t = self.V[2]; self.M = self.V[1]
        self.free = R.next; self.pa = 253; self.qr = 255
        self.sK, self.sK0, self.sCnt, self.sTry, self.sPub = 52, 53, 54, 55, 25
    def setup(self):
        a = self.a; t = self.t
        a(f"""
        s_and_b32 s56, {s(S_W)}, 1
        s_lshr_b32 s57, {s(S_W)}, 1
        s_mul_i32 {s(self.sK0)}, s57, {32*KVREC}
        s_lshr_b32 s58, {s(S_I0)}, 1
        s_mul_i32 s58, s58, 2560
        s_and_b32 s60, {s(S_I0)}, 1
        s_lshl_b32 s62, s60, 3
        s_add_u32 s62, s62, s58
        s_add_u32 s62, s62, 1024
        s_mul_i32 s60, s60, 1536
        s_add_u32 s58, s58, s60
        s_mul_i32 s59, {s(S_I0)}, 320
        s_mul_i32 s63, {s(S_I0)}, 20
        s_lshr_b32 s60, s63, 6
        s_lshl_b32 s60, s60, 7
        s_add_u32 s60, s60, {WS_KV + 81920}
        v_and_b32 {v(t)}, 31, {v(VL)}
        v_lshrrev_b32 {v(t+1)}, 5, {v(VL)}
        v_and_b32 {v(t+2)}, 3, {v(VL)}
        v_bfe_u32 {v(t+3)}, {v(VL)}, 2, 1
        v_lshl_or_b32 {v(t+2)}, {v(t+3)}, 4, {v(t+2)}
        v_bfe_u32 {v(t+3)}, {v(VL)}, 3, 2
        v_lshl_or_b32 {v(t+2)}, {v(t+3)}, 2, {v(t+2)}
        s_add_u32 s61, s58, {WS_KV}
        v_lshl_add_u32 {v(t+6)}, {v(t+2)}, 4, s61
        v_lshl_add_u32 {v(self.vK0)}, {v(t+1)}, 9, {v(t+6)}
        s_add_u32 s61, s62, {WS_KV}
        v_lshl_add_u32 {v(t+2)}, {v(t+2)}, 4, s61
        v_lshl_add_u32 {v(self.wo+6)}, {v(VL)}, 4, s58
        v_lshl_add_u32 {v(self.qr)}, {v(VL)}, 4, s62
        v_mov_b32 {v(t+3)}, s60
        v_cmp_gt_u32 vcc, 32, {v(VL)}
        v_mul_u32_u24 {v(t+4)}, 10240, {v(t+1)}
        s_add_u32 s61, s59, {WS_KV + 40960}
        v_cndmask_b32 {v(self.vK1)}, {v(t+3)}, {v(t+2)}, vcc
        v_lshl_add_u32 {v(t+4)}, {v(t)}, 4, {v(t+4)}
        v_add_u32 {v(t+4)}, s61, {v(t+4)}
        v_cmp_gt_u32 vcc, 20, {v(t)}
        v_add_u32 {v(t+5)}, 20480, {v(t+4)}
        v_mov_b32 {v(self.idx)}, 0xdddddddd
        v_cndmask_b32 {v(self.vV0)}, {v(t+3)}, {v(t+4)}, vcc
        v_cndmask_b32 {v(self.vV1)}, {v(t+3)}, {v(t+5)}, vcc
        s_mov_b32 {s(self.sTry)}, 0
        s_mov_b32 {s(self.sPub)}, 0
        """)
    def zero_q(self):
        for b in range(4):
            self.a(f"v_mov_b32 {v(self.Q[b]+4)}, 0\nv_mov_b32 {v(self.Q[b]+5)}, 0")
    def poll_addr(self):
        a = self.a; t = self.t
        q = a.label("pq"); go = a.label("pgo")
        a(f"""
        s_lshr_b32 s60, s63, 7
        s_add_u32 s61, s63, 19
        s_lshr_b32 s61, s61, 7
        s_sub_u32 s61, s61, s60
        v_bfe_u32 {v(t)}, {v(VL)}, 4, 1
        v_mul_u32_u24 {v(t)}, s61, {v(t)}
        v_add_u32 {v(t)}, s60, {v(t)}
        s_cmp_eq_u32 s57, 1
        s_cbranch_scc1 {q}
        v_lshrrev_b32 {v(t+1)}, 5, {v(VL)}
        v_mad_u32_u24 {v(t)}, {v(t+1)}, 5, {v(t)}
        v_add_u32 {v(t)}, 5, {v(t)}
        v_and_b32 {v(t+1)}, 15, {v(VL)}
        s_branch {go}
        {q}:
        v_and_b32 {v(t+1)}, 1, {v(VL)}
        s_lshl_b32 s60, {s(S_I1)}, 1
        v_add_u32 {v(t+1)}, s60, {v(t+1)}
        {go}:
        v_lshl_add_u32 {v(t)}, {v(t)}, 4, {v(t+1)}
        v_mul_u32_u24 {v(t)}, {FSTR}, {v(t)}
        v_add_u32 {v(self.pa)}, {FL_QKV}, {v(t)}
        s_lshl_b32 s59, {s(S_I1)}, 1
        s_add_u32 s59, s59, s56
        s_mul_i32 s59, s59, {4*QREC}
        """)
    def poll_first(self):
        a = self.a; sk = a.label("np1")
        a(f"""
        v_mov_b32 {v(self.pa+1)}, {s(S_NONCE)}
        s_cmp_eq_u32 s56, s57
        s_cbranch_scc1 {sk}
        buffer_load_dword {v(self.pa+1)}, {v(self.pa)}, {s(SW,4)}, 0 offen sc1
        {sk}:
        """)
    def poll_finish(self):
        a = self.a; slow = a.label("pslow"); dn = a.label("pdone")
        a(f"v_cmp_ne_u32 vcc, {s(S_NONCE)}, {v(self.pa+1)}\ns_cbranch_vccnz {slow}")
        self.bar.arrive()
        a(f"s_barrier\ns_branch {dn}\n{slow}:\ns_barrier")
        poll(a, self.pa, self.pa + 1)
        self.bar.arrive(count=False)
        a(f"{dn}:")
        lds_wait(a, v(VGEN))
    def q_loads(self, b):
        va = v(self.wo + 6); W = s(SW, 4)
        return [f"s_add_u32 s61, s59, {b*QREC}",
                f"buffer_load_dwordx4 {v(self.Q[b],4)}, {va}, {W}, s61 offen sc1",
                "s_mov_b32 exec_hi, 0",
                f"buffer_load_dwordx2 {v(self.Q[b]+4,2)}, {v(self.qr)}, {W}, s61 offen sc1",
                "s_mov_b32 exec_hi, -1"]
    def kv_loads(self, slot, withv=True):
        K = self.K[slot]; V = self.V[slot]; W = s(SW, 4); so = s(self.sK)
        L = [f"buffer_load_dwordx4 {v(K,4)}, {v(self.vK0)}, {W}, {so} offen sc1",
             f"buffer_load_dwordx2 {v(K+4,2)}, {v(self.vK1)}, {W}, {so} offen sc1"]
        if withv:
            L += [f"buffer_load_dwordx4 {v(V,4)}, {v(self.vV0)}, {W}, {so} offen sc1",
                  f"buffer_load_dwordx4 {v(V+4,4)}, {v(self.vV1)}, {W}, {so} offen sc1"]
        L.append(f"s_add_u32 {so}, {so}, {KVREC}")
        return L
    def M8(self, b, slot):
        return f"v_mfma_f32_32x32x8_bf16 {v(self.S[b],16)}, {v(self.K[slot]+4,2)}, {v(self.Q[b]+4,2)}, 0"
    def M16(self, b, slot):
        return f"v_mfma_f32_32x32x16_bf16 {v(self.S[b],16)}, {v(self.K[slot],4)}, {v(self.Q[b],4)}, {v(self.S[b],16)}"
    def SM(self, b, slot, g):
        return f"v_smfmac_f32_32x32x32_bf16 {v(self.O[b],16)}, {v(self.V[slot]+4*g,4)}, {v(self.S[b]+8*g,8)}, {v(self.idx)}"
    def zero_o(self):
        for b in range(4):
            for r in range(16): self.a(f"v_mov_b32 {v(self.O[b]+r)}, 0")
    def zero_s(self):
        a = self.a
        for r in range(16): a(f"v_mov_b32 {v(self.S[3]+r)}, 0")
        for r in range(8): a(f"v_mov_b32 {v(self.V[NSL-1]+r)}, 0")
    def main(self):
        a = self.a; gate = 112 + opt("gate", 16)
        seq = []
        def ld(tag, x):
            if x.startswith("buffer"): seq.append(tag)
            return x
        self.lastwait = None
        def need(*tags):
            k = max(len(seq) - 1 - seq[::-1].index(tg) for tg in tags)
            if self.lastwait is not None and k <= self.lastwait: return []
            self.lastwait = k
            return [f"s_waitcnt vmcnt({len(seq) - 1 - k})"]
        a(f"s_mov_b32 {s(self.sK)}, {s(self.sK0)}")
        kv0 = self.kv_loads(0)
        for x in kv0[:2]: a(ld(("k", 0), x))
        for b in (0, 1):
            for x in self.q_loads(b): a(ld(("q", b), x))
        for x in kv0[2:]: a(ld(("kv", 0), x))
        for b in (2, 3):
            for x in self.q_loads(b): a(ld(("q", b), x))
        for x in need(("k", 0), ("q", 0)): a(x)
        stamp(a, 5)
        a(self.M8(0, 0)); a(self.M16(0, 0))
        for x in self.kv_loads(1): a(ld(("kv", 1), x))
        a("s_nop 5")
        pend = []; nxt = 2
        LOOP = opt("loop", 1) and NSL == 4
        real = a; loop = a.label("attn")
        for blk in range(128):
            st, b = divmod(blk, 4)
            if LOOP:
                if blk == 16: a(f".p2align 3\n{loop}:")
                if blk == 32:
                    a(f"s_cbranch_scc1 {loop}")
                    a = lambda x: None
                if blk == 112: a = real
            e = [f"v_exp_f32 {v(self.S[b]+r)}, {v(self.S[b]+r)}" for r in range(16)]
            nb = (b + 1) % 4; nst = st if b < 3 else st + 1
            pb = (b - 1) % 4; pst = st if b > 0 else st - 1
            fin = blk == 127
            if blk < 3:
                for x in (need(("q", blk + 1), ("kv", 0)) if blk == 1 else need(("q", blk + 1))): a(x)
            slots = [[], []]
            if blk == 0:
                slots[1] = [ld(("kv", 2), x) for x in self.kv_loads(2)]; nxt = 3
            if b == 0 and nxt < 32 and nxt == st + NSL - 1:
                pend = self.kv_loads(nxt % NSL); tag = ("kv", nxt); nxt += 1
            for k in range(2):
                if pend and b <= 2 and not (b == 2 and k == 1) and blk > 0 or (pend and blk == 0 and False):
                    slots[k].append(ld(tag, pend.pop(0)))
            if b == 2:
                while pend: slots[0].append(ld(tag, pend.pop(0)))
                if st < 31: slots[1] += need(("kv", st + 1))
            if LOOP and blk == 15: slots[0].append(f"s_mov_b32 {s(self.sCnt)}, 0xfffffffa")
            if LOOP and blk == 31: slots[0].append(f"s_add_u32 {s(self.sCnt)}, {s(self.sCnt)}, 1"); slots[1].append(f"s_cmp_lg_u32 {s(self.sCnt)}, 0")
            if blk == gate: slots[0].append(f"ds_write_b32 {v(VBW)}, {v(self.idx)} offset:32")
            body = ([] if fin else [self.M8(nb, nst % NSL)]) + e[0:4] + ([] if fin else [self.M16(nb, nst % NSL)]) + e[4:7] + [self.SM(pb, pst % NSL, 0)] + slots[0] + e[7:10] + [self.SM(pb, pst % NSL, 1)] + slots[1] + e[10:16]
            for x in body: a(x)
        if gate == 128: a(f"ds_write_b32 {v(VBW)}, {v(self.idx)} offset:32")
        a("s_nop 1")
        a(self.SM(3, 31 % NSL, 0)); a(self.SM(3, 31 % NSL, 1))
    def maxpass(self):
        a = self.a; t = self.t
        a(f"s_mov_b32 {s(self.sK)}, {s(self.sK0)}")
        for b in range(4): a(f"v_mov_b32 {v(self.M+b)}, 0xff800000")
        a(f"s_mov_b32 {s(self.sCnt)}, 32")
        loop = a.label("maxp")
        a(f"{loop}:")
        for x in self.kv_loads(0, withv=False): a(x)
        a("s_waitcnt vmcnt(0)")
        for b in range(4): a(self.M8(b, 0)); a(self.M16(b, 0))
        a("s_nop 11")
        for b in range(4):
            for r in range(0, 16, 2):
                a(f"v_max3_f32 {v(self.M+b)}, {v(self.S[b]+r)}, {v(self.S[b]+r+1)}, {v(self.M+b)}")
        a(f"s_sub_u32 {s(self.sCnt)}, {s(self.sCnt)}, 1\ns_cmp_lg_u32 {s(self.sCnt)}, 0\ns_cbranch_scc1 {loop}")
        a(f"""
        s_lshl_b32 s61, {s(S_W)}, 10
        s_add_u32 s61, s61, {L_ARED}
        v_lshl_add_u32 {v(t)}, {v(VL)}, 4, s61
        ds_write_b128 {v(t)}, {v(self.M,4)}
        s_waitcnt lgkmcnt(0)
        """)
        self.bar(count=False)
        S = self.S[0]
        a(f"""
        v_and_b32 {v(t)}, 31, {v(VL)}
        s_lshl_b32 s61, s56, 10
        s_add_u32 s61, s61, {L_ARED}
        v_lshl_add_u32 {v(t)}, {v(t)}, 4, s61
        ds_read_b128 {v(S,4)}, {v(t)}
        ds_read_b128 {v(S+4,4)}, {v(t)} offset:512
        ds_read_b128 {v(S+8,4)}, {v(t)} offset:2048
        ds_read_b128 {v(S+12,4)}, {v(t)} offset:2560
        s_waitcnt lgkmcnt(0)
        """)
        self.bar(count=False)
        a("s_mov_b32 exec_lo, 0")
        for b in range(4):
            m = self.M + b
            a(f"""
            v_max3_f32 {v(m)}, {v(S+b)}, {v(S+4+b)}, {v(S+8+b)}
            v_max_f32 {v(m)}, {v(m)}, {v(S+12+b)}
            v_sub_f32 {v(m)}, 0, {v(m)}
            v_and_b32 {v(t)}, 0xffff0000, {v(m)}
            v_sub_f32 {v(t+1)}, {v(m)}, {v(t)}
            v_and_b32 {v(t+2)}, 0xffff0000, {v(t+1)}
            v_sub_f32 {v(t+1)}, {v(t+1)}, {v(t+2)}
            v_lshrrev_b32 {v(t)}, 16, {v(t)}
            v_or_b32 {v(self.Q[b]+4)}, {v(t)}, {v(t+2)}
            v_lshrrev_b32 {v(self.Q[b]+5)}, 16, {v(t+1)}
            """)
        a("s_mov_b32 exec_lo, -1")
    def epi_setup(self):
        a = self.a; t = self.t; w = self.wo; WB = 6656
        a(f"""
        s_mul_i32 s61, {s(S_W)}, {WB}
        s_add_u32 s61, s61, {L_ARED}
        s_xor_b32 s62, {s(S_W)}, 2
        s_mul_i32 s62, s62, {WB}
        s_add_u32 s62, s62, {L_ARED}
        v_lshl_add_u32 {v(w)}, {v(VL)}, 4, s61
        v_lshl_add_u32 {v(w+1)}, {v(VL)}, 2, s61
        v_lshl_add_u32 {v(w+2)}, {v(VL)}, 4, s62
        v_lshl_add_u32 {v(w+3)}, {v(VL)}, 2, s62
        s_lshl_b32 s64, {s(S_I1)}, 1
        s_add_u32 s64, s64, s56
        s_lshl_b32 s64, s64, 1
        s_add_u32 s64, s64, s57
        s_mul_i32 s64, s64, {4*OREC}
        s_add_u32 s64, s64, {WS_O}
        s_add_u32 s65, s64, {2*OREC}
        v_bfe_u32 {v(t)}, {v(VL)}, 4, 1
        v_mul_u32_u24 {v(t)}, {OREC}, {v(t)}
        v_and_b32 {v(t+1)}, 15, {v(VL)}
        v_lshrrev_b32 {v(t+2)}, 5, {v(VL)}
        v_lshl_add_u32 {v(t+2)}, {v(t+2)}, 8, {v(t)}
        v_lshl_add_u32 {v(t+2)}, {v(t+1)}, 4, {v(t+2)}
        s_lshl_b32 s61, {s(S_I0)}, 9
        v_add_u32 {v(w+4)}, s61, {v(t+2)}
        v_lshl_add_u32 {v(t+3)}, {v(t+1)}, 3, {v(t)}
        s_lshl_b32 s61, {s(S_I0)}, 7
        s_add_u32 s61, s61, 16384
        v_add_u32 {v(w+5)}, s61, {v(t+3)}
        """)
    def reduce_store(self, lab_retry):
        a = self.a; t = self.t; w = self.wo
        l1 = a.label("red1"); l2 = a.label("red2")
        a(f"s_cmp_eq_u32 s57, 0\ns_cbranch_scc0 {l1}")
        for kh in range(2):
            if kh: a(f"{l1}:")
            for i in range(2):
                O = self.O[2 * (1 - kh) + i]
                for g in range(3):
                    a(f"ds_write_b128 {v(w)}, {v(O+4*g,4)} offset:{3328*i + 1024*g}")
                a(f"ds_write_b32 {v(w+1)}, {v(O+12)} offset:{3328*i + 3072}")
            self.bar(count=(kh == 0))
            for i in range(2):
                a(f"ds_read_b32 {v(self.S[i]+12)}, {v(w+3)} offset:{3328*i + 3072}")
                for g in range(3):
                    a(f"ds_read_b128 {v(self.S[i]+4*g,4)}, {v(w+2)} offset:{3328*i + 1024*g}")
            for i in range(2):
                O = self.O[2 * kh + i]
                a(f"s_waitcnt lgkmcnt({4*(1-i)})")
                a(f"v_add_f32 {v(self.S[i]+12)}, {v(self.S[i]+12)}, {v(O+12)}")
                a(f"v_rcp_f32 {v(self.S[i]+14)}, {v(self.S[i]+12)}")
                if opt("rpk"):
                    for r in range(0, 12, 2): a(f"v_pk_add_f32 {v(self.S[i]+r,2)}, {v(self.S[i]+r,2)}, {v(O+r,2)}")
                else:
                    for r in range(12): a(f"v_add_f32 {v(self.S[i]+r)}, {v(self.S[i]+r)}, {v(O+r)}")
            if not kh: a(f"s_branch {l2}")
        a(f"{l2}:")
        nost = a.label("nost"); nofl = a.label("nofl")
        a(f"s_cmp_lg_u32 {s(self.sPub)}, 0\ns_cbranch_scc1 {nost}")
        for i in range(2):
            P = self.S[2] + 8 * i
            if opt("rpk"):
                for r in range(0, 12, 2): a(f"v_pk_mul_f32 {v(self.S[i]+r,2)}, {v(self.S[i]+r,2)}, {v(self.S[i]+14,2)} op_sel_hi:[1,0]")
            else:
                for r in range(12): a(f"v_mul_f32 {v(self.S[i]+r)}, {v(self.S[i]+r)}, {v(self.S[i]+14)}")
            for r in range(6): a(f"v_cvt_pk_bf16_f32 {v(P+r)}, {v(self.S[i]+2*r)}, {v(self.S[i]+2*r+1)}")
            a(f"buffer_store_dwordx4 {v(P,4)}, {v(w+4)}, {s(SW,4)}, {s(64+i)} offen sc1")
            a("s_mov_b32 exec_hi, 0")
            a(f"buffer_store_dwordx2 {v(P+4,2)}, {v(w+5)}, {s(SW,4)}, {s(64+i)} offen sc1")
            a("s_mov_b32 exec_hi, -1")
        if opt("gate", 16) == 17: a(f"ds_write_b32 {v(VBW)}, {v(self.idx)} offset:32")
        a(f"""
        v_min_f32 {v(t+4)}, {v(self.S[0]+12)}, {v(self.S[1]+12)}
        v_max_f32 {v(t+5)}, {v(self.S[0]+12)}, {v(self.S[1]+12)}
        v_add_f32 {v(t+6)}, {v(self.S[0]+12)}, {v(self.S[1]+12)}
        """)
        for i in range(2):
            for r in range(12):
                a(f"v_fma_f32 {v(t+6)}, {v(self.S[i]+r)}, 0, {v(t+6)}")
        a(f"""
        s_lshl_b32 s40, {s(S_I1)}, 1
        s_add_u32 s40, s40, s56
        s_lshl_b32 s40, s40, 1
        s_add_u32 s40, s40, s57
        s_lshl_b32 s40, s40, 5
        s_add_u32 s40, s40, {s(S_I0)}
        s_mul_i32 s40, s40, {FSTR}
        s_add_u32 s40, s40, {FL_O}
        v_cmp_nle_f32 vcc, 0x2f800000, {v(t+4)}
        s_mov_b64 s[62:63], vcc
        v_cmp_nge_f32 vcc, 0x5f800000, {v(t+5)}
        s_or_b64 s[62:63], s[62:63], vcc
        v_cmp_u_f32 vcc, {v(t+6)}, {v(t+6)}
        s_or_b64 s[62:63], s[62:63], vcc
        s_cselect_b32 s61, 1, 0
        v_mov_b32 {v(t+4)}, s61
        ds_write_b32 {v(VBW)}, {v(t+4)} offset:48
        s_cmp_gt_u32 s61, {s(self.sTry)}
        s_cbranch_scc1 {nost}
        s_mov_b32 {s(self.sPub)}, 1
        """)
        self.bar.arrive()
        a("s_waitcnt vmcnt(0)")
        set_flag(a, 40, 6)
        a(f"s_branch {nofl}\n{nost}:")
        self.bar.arrive(count=False)
        a(f"{nofl}:")
        stamp(a, 7)
        lds_wait(a, v(VGEN))
        a(f"""
        ds_read_b32 {v(t+4)}, {v(VBR)} offset:48
        s_waitcnt lgkmcnt(0)
        v_cmp_lt_u32 vcc, {s(self.sTry)}, {v(t+4)}
        s_cbranch_vccnz {lab_retry}
        """)

def wo_addr(a, vo, t, S):
    a.srd(S, P_WO, 640 * 1280)
    for i in range(5):
        a(f"""
        v_add_u32 {v(t)}, {64*i}, {v(VL)}
        v_mul_u32_u24 {v(t+1)}, 6554, {v(t)}
        v_lshrrev_b32 {v(t+1)}, 16, {v(t+1)}
        v_mul_u32_u24 {v(t+1)}, {1280-160}, {v(t+1)}
        v_lshl_add_u32 {v(vo+i)}, {v(VL)}, 4, {v(t+1)}
        """)
    a(f"v_add_u32 {v(vo+4)}, 4096, {v(vo+4)}")
def wo_load(a, vo, S, s_ct, groups):
    a(f"""
    s_mul_i32 s60, {s(s_ct)}, 160
    s_mul_i32 s61, {s(S_W)}, {32*1280}
    s_add_u32 s60, s60, s61
    s_add_u32 s60, s60, {groups[0]*128*1280}
    s_mul_i32 s61, {s(S_W)}, 5120
    """)
    for g in groups:
        a(f"s_add_u32 m0, s61, {L_WO + g*20480}\ns_nop 0")
        for i in range(4):
            a(f"buffer_load_dwordx4 {v(vo+i)}, {s(S,4)}, s60 offen offset:{1024*i} lds")
        a(f"s_add_u32 m0, s61, {L_WO + g*20480 + 4096}\ns_nop 0")
        a(f"buffer_load_dwordx4 {v(vo+4)}, {s(S,4)}, s60 offen lds")
        if g != groups[-1]: a(f"s_add_u32 s60, s60, {128*1280}")

class A3:
    def __init__(self, a, bar):
        self.a = a; self.bar = bar
        R = Regs(16)
        self.aw = R.alloc("aw", 4); self.t = R.alloc("t", 4)
        self.Of = R.alloc("Of", 80, 4)
        self.NW = opt("nw", 6)
        self.W = [R.alloc(f"W{i}", 20, 4) for i in range(self.NW)]
        self.acc = R.alloc("acc", 20, 4)
        self.SO = 52
    def setup(self):
        a = self.a; t = self.t; aw = self.aw
        a.srd(self.SO, P_OUT, 2048 * 5120)
        a(f"""
        v_bfe_u32 {v(t)}, {v(VL)}, 2, 2
        v_bfe_u32 {v(t+1)}, {v(VL)}, 4, 1
        v_lshl_add_u32 {v(t+1)}, {v(t+1)}, 2, {v(t)}
        v_lshrrev_b32 {v(t+2)}, 5, {v(VL)}
        v_mad_u32_u24 {v(t+1)}, {v(t+2)}, 20, {v(t+1)}
        v_mul_u32_u24 {v(t+1)}, 160, {v(t+1)}
        v_and_b32 {v(t+3)}, 3, {v(VL)}
        v_lshlrev_b32 {v(t+3)}, 3, {v(t+3)}
        v_add_u32 {v(t+3)}, {L_WO}, {v(t+3)}
        v_add_u32 {v(aw)}, {v(t+1)}, {v(t+3)}
        v_add_u32 {v(aw+1)}, 51200, {v(aw)}
        v_lshrrev_b32 {v(t+2)}, 4, {v(VL)}
        v_mad_u32_u24 {v(t+1)}, {v(t+2)}, 20, {v(t)}
        v_add_u32 {v(t+1)}, 16, {v(t+1)}
        v_mul_u32_u24 {v(t+1)}, 160, {v(t+1)}
        v_add_u32 {v(aw+2)}, {v(t+1)}, {v(t+3)}
        v_add_u32 {v(aw+3)}, 51200, {v(aw+2)}
        s_lshl_b32 s56, {s(S_I0)}, 2
        s_add_u32 s56, s56, {s(S_W)}
        s_mul_i32 s57, s56, {OREC}
        s_add_u32 s57, s57, {WS_O}
        s_mul_i32 s58, s56, {16*5120}
        s_mul_i32 s59, {s(S_I1)}, 320
        s_add_u32 s58, s58, s59
        v_lshlrev_b32 {v(t)}, 4, {v(VL)}
        v_lshlrev_b32 {v(t+1)}, 3, {v(VL)}
        v_and_b32 {v(t+3)}, 15, {v(VL)}
        v_mul_u32_u24 {v(t+3)}, 5120, {v(t+3)}
        v_lshl_add_u32 {v(t+2)}, {v(t+2)}, 4, {v(t+3)}
        """)
    def poll_o(self):
        a = self.a; sk = a.label("nopo")
        a(f"""
        s_cmp_lg_u32 {s(S_W)}, 1
        s_cbranch_scc1 {sk}
        s_mul_i32 s60, {s(S_I0)}, {32*FSTR}
        s_add_u32 s60, s60, {FL_O}
        v_and_b32 v6, 31, {v(VL)}
        v_mul_u32_u24 v6, {FSTR}, v6
        v_add_u32 v6, s60, v6
        """)
        poll(a, 6, 7)
        a(f"{sk}:\ns_waitcnt vmcnt(0)")
    def o_loads(self):
        t = self.t; out = []
        for st in range(16):
            pre = ["s_add_u32 s57, s57, 4096"] if st and st % 4 == 0 else []
            out.append(pre + [f"buffer_load_dwordx4 {v(self.Of+4*st,4)}, {v(t)}, {s(SW,4)}, s57 offen offset:{1024*(st%4)} sc1"])
        for st in range(4):
            pre = ["s_add_u32 s57, s57, 4096"] if st == 0 else []
            out.append(pre + [f"buffer_load_dwordx2 {v(self.Of+64+4*st+2*j,2)}, {v(t+1)}, {s(SW,4)}, s57 offen offset:{1024*st+512*j} sc1" for j in range(2)])
        return out
    def wreads(self, st):
        W = self.W[st % self.NW]; out = []
        for i in range(5):
            for j in range(2):
                if st < 16: off = st * 6400 + j * 1280 + i * 32; r = self.aw
                else: off = (st - 16) * 25600 + j * 12800 + i * 32; r = self.aw + 2
                if off >= 51200: off -= 51200; r += 1
                out.append(f"ds_read_b64_tr_b16 {v(W+4*i+2*j,2)}, {v(r)} offset:{off}")
        return out
    def pre(self):
        for st in range(self.NW - 1):
            for x in self.wreads(st): self.a(x)
    def compute(self):
        a = self.a; NW = self.NW; L = self.o_loads(); LEAD = opt("olead", 10)
        cnt = lambda k: sum(1 for g in L[:k] for x in g if x.startswith("buffer"))
        for g in L[:LEAD]:
            for x in g: a(x)
        issued = LEAD
        for st in range(20):
            lg = "" if st < NW - 1 else f" lgkmcnt({min(10, 10 * (19 - st))})"
            a(f"s_waitcnt vmcnt({cnt(issued) - cnt(st + 1)}){lg}")
            if st == opt("oarr", 12) and opt("obgate", 5) == 5: self.bar.arrive()
            rd = self.wreads(st + NW - 1) if st + NW - 1 < 20 else []
            W = self.W[st % NW]
            for i in range(5):
                d = self.acc + 4 * i
                a(f"v_mfma_f32_16x16x32_bf16 {v(d,4)}, {v(W+4*i,4)}, {v(self.Of+4*st,4)}, {'0' if st == 0 else v(d,4)}")
                for x in rd[2*i:2*i+2]: a(x)
                if i == 0 and issued < 20:
                    for x in L[issued]: a(x)
                    issued += 1
        a("s_nop 7")
        for i in range(5):
            a(f"buffer_store_dwordx4 {v(self.acc+4*i,4)}, {v(self.t+2)}, {s(self.SO,4)}, s58 offen offset:{64*i} {OPT.get('oa','sc1').replace('+',' ')}")
```

```python
from fcommon import *
from fl import S_TC, S_CG, S_I0, S_I1, wo_addr

class MRegs:
    def __init__(self):
        R = Regs(24)
        self.L1 = R.alloc("L1", 28, 4); self.LP = self.L1 + 10; self.LS = self.L1 + 20
        self.t = R.alloc("t", 16, 4)
        self.CP = R.alloc("CP", 8, 4)
        self.ar = [R.alloc(f"ar{i}", 6) for i in range(2)]
        self.acc = R.alloc("acc", 64, 4)
        self.F = R.alloc("F", 64, 4)
        self.X = R.alloc("X", 40, 4)
        self.end = R.next

class A1:
    def __init__(self, a, T):
        self.a = a
        f = T.free
        self.ax = [f, f + 2]; self.aw = [f + 4, f + 8]; self.t = f + 12; self.nn = f + 16; self.end = f + 18
        self.acc = T.S[0]; self.F = [T.S[0] - 64, T.S[0] - 32]
        self.pk = self.F[0]; self.sa = self.t; self.stores = [[], []]
    def setup(self):
        a = self.a; t = self.t; ax = self.ax; aw = self.aw
        a(f"""
        s_and_b32 s16, {s(S_W)}, 1
        s_lshr_b32 s17, {s(S_W)}, 1
        v_and_b32 {v(t)}, 15, {v(VL)}
        v_lshrrev_b32 {v(t+1)}, 4, {v(VL)}
        v_lshrrev_b32 {v(t+2)}, 1, {v(t)}
        v_xor_b32 {v(t+2)}, {v(t+2)}, {v(t+1)}
        v_lshlrev_b32 {v(t+2)}, 4, {v(t+2)}
        v_lshl_add_u32 {v(t+2)}, {v(t)}, 7, {v(t+2)}
        s_lshl_b32 s18, s16, 13
        s_add_u32 s18, s18, {L_RING}
        v_add_u32 {v(ax[0])}, s18, {v(t+2)}
        v_xor_b32 {v(ax[0]+1)}, 64, {v(ax[0])}
        v_bfe_u32 {v(t+2)}, {v(VL)}, 2, 2
        v_lshl_add_u32 {v(t+3)}, {v(t+1)}, 3, {v(t+2)}
        v_lshlrev_b32 {v(t+3)}, 8, {v(t+3)}
        v_bfe_u32 {v(t+2)}, {v(VL)}, 2, 3
        s_lshl_b32 s18, s17, 2
        v_xor_b32 {v(t+2)}, s18, {v(t+2)}
        v_lshl_add_u32 {v(t+3)}, {v(t+2)}, 5, {v(t+3)}
        v_and_b32 {v(t+2)}, 3, {v(VL)}
        v_lshl_add_u32 {v(t+3)}, {v(t+2)}, 3, {v(t+3)}
        v_add_u32 {v(aw[0])}, {L_RING + 16384}, {v(t+3)}
        v_xor_b32 {v(aw[0]+1)}, 32, {v(aw[0])}
        v_xor_b32 {v(aw[0]+2)}, 64, {v(aw[0])}
        v_xor_b32 {v(aw[0]+3)}, 0x60, {v(aw[0])}
        """)
        for j in range(2): a(f"v_add_u32 {v(ax[1]+j)}, 0x10000, {v(ax[0]+j)}")
        for j in range(4): a(f"v_add_u32 {v(aw[1]+j)}, 0x10000, {v(aw[0]+j)}")
    def reads(self, step):
        st, ks = divmod(step, 2); slot = st % NRING; F = self.F[step & 1]
        base = (slot & 1) * 32768; se = slot // 2; out = []
        for i in range(4):
            out.append(f"ds_read_b128 {v(F+4*i,4)}, {v(self.ax[se]+ks)} offset:{base + 2048*i}")
            for j in range(2):
                out.append(f"ds_read_b64_tr_b16 {v(F+16+4*i+2*j,2)}, {v(self.aw[se]+i)} offset:{base + 8192*ks + 1024*j}")
        return out
    def mf(self, step, vmode):
        F = self.F[step & 1]; out = []
        for tt in range(4):
            for ct in (range(4) if tt % 2 == 0 else range(3, -1, -1)):
                d = self.acc + 16 * tt + 4 * ct
                A, B = (F + 4*tt, F + 16 + 4*ct) if vmode else (F + 16 + 4*ct, F + 4*tt)
                out.append(f"v_mfma_f32_16x16x32_bf16 {v(d,4)}, {v(A,4)}, {v(B,4)}, {'0' if step == 0 else v(d,4)}")
        return out
    def loop(self, vmode):
        a = self.a
        for step in range(21):
            if step: a("s_waitcnt lgkmcnt(0)")
            if step % 2 == 0: a("s_barrier")
            if step == 0: stamp(a, 1)
            if opt("qst") == 1 and step % 2 == 0 and step: stamp(a, 1 + step // 2, True)
            rd = self.reads(step) if step < 20 else []
            mm = self.mf(step - 1, vmode) if step else []
            for i in range(16):
                for x in rd[2*i:2*i+2]: a(x)
                if i < len(mm): a(mm[i])
            if step == 18: nonce_load(a, self.nn)
    def epilogue(self, vmode):
        a = self.a; t = self.t; acc = self.acc; pk = self.pk; sa = self.sa
        now = opt('st0', 8)
        a(f"s_lshl_b32 s18, {s(self.mt)}, 1\ns_add_u32 s18, s18, s16\ns_lshl_b32 s18, s18, 1")
        if not vmode:
            a(f"""
            s_cmp_lt_u32 {s(self.nt)}, 5
            s_cselect_b32 s19, {QREC}, 0
            s_cselect_b32 s24, 0, {KVREC}
            s_add_u32 s19, s19, s24
            s_cmp_lt_u32 {s(self.nt)}, 5
            s_cselect_b32 s24, 0, {WS_KV - 5*32*256}
            s_cselect_b32 s28, {QSCALE}, 1.0
            s_mov_b32 s29, s28
            s_mul_i32 s26, s18, s19
            s_add_u32 s26, s26, s24
            s_lshl_b32 s24, {s(self.nt)}, 1
            s_add_u32 s24, s24, s17
            s_lshl_b32 s24, s24, 12
            s_add_u32 s26, s26, s24
            s_add_u32 s27, s26, s19
            v_lshlrev_b32 {v(sa)}, 4, {v(VL)}
            """)
            for u in range(2):
                for ct in range(4):
                    p = pk + 16 * u + 4 * ct
                    for h in range(2):
                        d = acc + 16 * (2*u + h) + 4 * ct
                        a(f"v_pk_mul_f32 {v(d,2)}, {v(d,2)}, s[28:29]\nv_pk_mul_f32 {v(d+2,2)}, {v(d+2,2)}, s[28:29]")
                    for h in range(2):
                        d = acc + 16 * (2*u + h) + 4 * ct
                        a(f"v_cvt_pk_bf16_f32 {v(p+2*h)}, {v(d)}, {v(d+1)}\nv_cvt_pk_bf16_f32 {v(p+2*h+1)}, {v(d+2)}, {v(d+3)}")
                    a(f"s_nop 0\nv_permlane16_swap_b32 {v(p)}, {v(p+2)}\nv_permlane16_swap_b32 {v(p+1)}, {v(p+3)}")
                    a(f"buffer_store_dwordx4 {v(p,4)}, {v(sa)}, {s(SW,4)}, {s(26+u)} offen offset:{1024*ct} sc1")
            return 8
        a(f"""
        s_mul_i32 s26, s18, {KVREC}
        s_lshl_b32 s24, {s(self.nt)}, 1
        s_add_u32 s24, s24, s17
        s_sub_u32 s24, s24, 20
        s_lshl_b32 s19, s24, 7
        s_add_u32 s28, s26, s19
        s_add_u32 s28, s28, {WS_KV + 81920}
        s_lshl_b32 s24, s24, 10
        s_add_u32 s26, s26, s24
        s_add_u32 s26, s26, {WS_KV + 40960}
        s_add_u32 s27, s26, {KVREC}
        v_mul_u32_u24 {v(t+1)}, 10240, {v(t+1)}
        v_lshl_add_u32 {v(sa)}, {v(t)}, 4, {v(t+1)}
        v_lshrrev_b32 {v(t+2)}, 5, {v(VL)}
        v_mul_u32_u24 {v(t+2)}, {KVREC - 128}, {v(t+2)}
        v_lshl_add_u32 {v(t+2)}, {v(VL)}, 2, {v(t+2)}
        v_mov_b32 {v(t+3)}, 0x3f803f80
        buffer_store_dword {v(t+3)}, {v(t+2)}, {s(SW,4)}, s28 offen sc1
        """)
        for u in range(2):
            for ct in range(4):
                p = pk + 16 * u + 4 * ct
                for h in range(2):
                    d = acc + 16 * (2*u + h) + 4 * ct
                    a(f"v_cvt_pk_bf16_f32 {v(p+2*h)}, {v(d)}, {v(d+1)}\nv_cvt_pk_bf16_f32 {v(p+2*h+1)}, {v(d+2)}, {v(d+3)}")
                x = f"buffer_store_dwordx4 {v(p,4)}, {v(sa)}, {s(SW,4)}, {s(26+u)} offen offset:{256*ct} sc1"
                if 4 * u + ct < now: a(x)
                else: self.stores[1].append(x)
        return now + 1

class B1:
    def __init__(self, a, bar, m):
        self.a = a; self.bar = bar
        self.t = m.t; self.L1 = m.L1; self.LP = m.LP; self.LS = m.LS; self.CP = m.CP; self.ar = m.ar
        self.KEEP = m.acc; self.SEND = m.acc + 20; self.RECV = m.acc + 40
        self.F = [m.F, m.F + 28]; self.Y = m.F
        self.U = m.X
        self.X = m.acc
        self.SX2 = 56
    def cprep_addr(self):
        a = self.a
        for it in range(2):
            u, c, d = self.CP + 4 * it, self.CP + 1 + 4 * it, self.CP + 2 + 4 * it
            a(f"""
            s_lshl_b32 s60, {s(S_W)}, 2
            s_add_u32 s60, s60, {16*it}
            v_lshrrev_b32 {v(u)}, 4, {v(VL)}
            v_add_u32 {v(u)}, s60, {v(u)}
            v_min_u32 {v(u)}, 24, {v(u)}
            s_mul_i32 s60, {s(S_TC)}, 25
            v_add_u32 {v(u)}, s60, {v(u)}
            v_mul_u32_u24 {v(d)}, 3277, {v(u)}
            v_lshrrev_b32 {v(d)}, 16, {v(d)}
            v_mul_u32_u24 {v(c)}, 20, {v(d)}
            v_sub_u32 {v(c)}, {v(u)}, {v(c)}
            v_and_b32 {v(d+1)}, 15, {v(VL)}
            s_mul_i32 s60, {s(S_TC)}, 5
            s_lshr_b32 s60, s60, 2
            v_subrev_u32 {v(u)}, s60, {v(d)}
            v_lshl_add_u32 {v(u)}, {v(u)}, 4, {v(d+1)}
            v_mul_u32_u24 {v(u)}, 192, {v(u)}
            v_lshl_add_u32 {v(u)}, {v(c)}, 3, {v(u)}
            s_lshl_b32 s60, {s(S_CG)}, 5
            s_and_b32 s60, s60, 32
            v_add_u32 {v(u)}, s60, {v(u)}
            v_mul_u32_u24 {v(d)}, {HREC}, {v(d)}
            v_lshl_add_u32 {v(d)}, {v(c)}, 8, {v(d)}
            v_lshl_add_u32 {v(d)}, {v(d+1)}, 4, {v(d)}
            v_lshlrev_b32 {v(c)}, 5, {v(c)}
            """)
    def craw_addr(self):
        a = self.a
        self.cr = [self.t + 10, self.CP + 3, self.CP + 7]
        a(f"s_and_b32 s60, {s(S_W)}, 1\ns_mul_i32 s60, s60, 192")
        for i in range(3):
            a(f"""
            v_add_u32 v6, s60, {v(VL)}
            v_mul_u32_u24 v7, 5462, v6
            v_lshrrev_b32 v7, 16, v7
            v_mul_u32_u24 v7, {1280-192}, v7
            v_lshl_add_u32 v6, v6, 4, v7
            v_subrev_u32 {v(self.cr[i])}, {1024*i}, v6
            s_add_u32 s60, s60, 64
            """)
    def craw_load(self):
        a = self.a
        a(f"""
        s_mul_i32 s6, {s(S_TC)}, 5
        s_lshr_b32 s6, s6, 2
        s_mul_i32 s6, s6, {16*1280}
        s_mul_i32 s7, {s(S_CG)}, 160
        s_and_b32 s7, s7, 0xffc0
        s_add_u32 s6, s6, s7
        s_mul_i32 s7, {s(S_W)}, 3072
        """)
        for j, P in enumerate((P_CRE, P_CIM)):
            a(f"s_add_u32 m0, s7, {L_CRAW + 6144*j}")
            a.srd(self.SX2, P, 640 * 1280)
            for i in range(3):
                a(f"buffer_load_dwordx4 {v(self.cr[i])}, {s(self.SX2,4)}, s6 offen offset:{1024*i} lds")
    def cprep_calc(self):
        a = self.a; t = self.t + 8; X = self.Y + 40; K = self.X
        a(f"s_mul_i32 s60, {s(S_CG)}, {20*256}\ns_add_u32 s60, s60, {WS_C}")
        for it in range(2):
            a(f"ds_read_b128 {v(K+8*it,4)}, {v(self.CP+1+4*it)} offset:{L_COEF}\nds_read_b128 {v(K+8*it+4,4)}, {v(self.CP+1+4*it)} offset:{L_COEF+16}")
            a(f"ds_read_b64 {v(X+4*it,2)}, {v(self.CP+4*it)} offset:{L_CRAW}\nds_read_b64 {v(X+4*it+2,2)}, {v(self.CP+4*it)} offset:{L_CRAW+6144}")
        for it in range(2):
            a(f"s_waitcnt lgkmcnt({4-4*it})")
            o = X + 8 + 4 * it
            for i in range(4):
                re = X + 4 * it + (i >> 1); im = re + 2
                if i & 1: a(f"v_and_b32 {v(t+4)}, 0xffff0000, {v(re)}\nv_and_b32 {v(t+5)}, 0xffff0000, {v(im)}")
                else: a(f"v_lshlrev_b32 {v(t+4)}, 16, {v(re)}\nv_lshlrev_b32 {v(t+5)}, 16, {v(im)}")
                k = K + 8*it + 2 * i
                a(f"""
                v_pk_mul_f32 {v(t+6,2)}, {v(t+4,2)}, {v(k,2)} op_sel:[0,0] op_sel_hi:[0,1] neg_hi:[0,1]
                v_pk_fma_f32 {v(t+6,2)}, {v(t+4,2)}, {v(k,2)}, {v(t+6,2)} op_sel:[1,1,0] op_sel_hi:[1,0,1] neg_lo:[1,0,0] neg_hi:[1,0,0]
                v_cvt_pk_bf16_f32 {v(o+i)}, {v(t+6)}, {v(t+7)}
                """)
            a(f"buffer_store_dwordx4 {v(o,4)}, {v(self.CP+2+4*it)}, {s(SW,4)}, s60 offen sc1")
    def gemm_setup(self):
        a = self.a; t = self.t + 10; ar = self.ar[0]
        a(f"""
        s_and_b32 s60, {s(S_W)}, 1
        s_lshr_b32 s61, {s(S_W)}, 1
        s_lshl_b32 s6, s60, 1
        s_add_u32 s6, s6, s61
        s_xor_b32 s7, s6, 2
        s_mul_i32 s6, s6, 7168
        s_mul_i32 s7, s7, 7168
        s_add_u32 s6, s6, {L_RING + 5120}
        s_add_u32 s7, s7, {L_RING + 5120}
        v_and_b32 {v(t)}, 15, {v(VL)}
        v_lshrrev_b32 {v(t+1)}, 4, {v(VL)}
        v_lshrrev_b32 {v(t+2)}, 1, {v(t)}
        v_xor_b32 {v(t+2)}, {v(t+2)}, {v(t+1)}
        v_lshlrev_b32 {v(t+2)}, 4, {v(t+2)}
        v_lshl_add_u32 {v(t+3)}, {v(t)}, 7, {v(t+2)}
        v_add_u32 {v(ar)}, s6, {v(t+3)}
        v_xor_b32 {v(ar+1)}, 64, {v(ar)}
        v_add_u32 {v(ar+2)}, s7, {v(t+3)}
        v_xor_b32 {v(ar+3)}, 64, {v(ar+2)}
        v_lshrrev_b32 {v(t+4)}, 3, {v(t)}
        v_mul_u32_u24 {v(t+4)}, {7168-1024}, {v(t+4)}
        s_mul_i32 s6, s60, 14336
        s_add_u32 s6, s6, {L_RING}
        v_add3_u32 {v(ar+4)}, {v(t+3)}, {v(t+4)}, s6
        v_xor_b32 {v(ar+5)}, 64, {v(ar+4)}
        s_and_b32 s40, {s(S_CG)}, 3
        s_mul_i32 s40, s40, 3
        s_and_b32 s6, {s(S_TC)}, 7
        s_add_u32 s40, s40, s6
        s_sub_u32 s6, s40, 10
        s_cmp_ge_u32 s40, 10
        s_cselect_b32 s40, s6, s40
        """)
        for j in range(6): a(f"v_add_u32 {v(self.ar[1]+j)}, 0x10000, {v(ar+j)}")
    def reads(self, step):
        st, ks = divmod(step, 2); F = self.F[step & 1]; slot = (st + 10) % NRING
        off = (slot & 1) * 32768; ar = self.ar[slot // 2]
        out = [f"ds_read_b128 {v(F+4*u,4)}, {v(ar+2*u+ks)} offset:{off}" for u in range(2)]
        out += [f"ds_read_b128 {v(F+8+4*g,4)}, {v(ar+4+ks)} offset:{off + g*1024}" for g in range(5)]
        return out
    def mf(self, step):
        F = self.F[step & 1]; out = []
        for u in range(2):
            for g in (range(5) if u == 0 else range(4, -1, -1)):
                d = (self.KEEP if u == 0 else self.SEND) + 4 * g
                out.append(f"v_mfma_f32_16x16x32_bf16 {v(d,4)}, {v(F+4*u,4)}, {v(F+8+4*g,4)}, {'0' if step == 0 else v(d,4)}")
        return out
    def cexp(self, dst, z, mul, t):
        a = self.a
        if mul is None:
            a(f"v_fract_f32 {v(t+1)}, {v(z+1)}\nv_exp_f32 {v(t)}, {v(z)}")
        else:
            a(f"v_mul_f32 {v(t)}, {mul}, {v(z)}\nv_mul_f32 {v(t+1)}, {mul}, {v(z+1)}\nv_fract_f32 {v(t+1)}, {v(t+1)}\nv_exp_f32 {v(t)}, {v(t)}")
        a(f"""
        v_cos_f32 {v(dst)}, {v(t+1)}
        v_sin_f32 {v(dst+1)}, {v(t+1)}
        s_nop 0
        v_mul_f32 {v(dst)}, {v(dst)}, {v(t)}
        v_mul_f32 {v(dst+1)}, {v(dst+1)}, {v(t)}
        """)
    def params2_read(self):
        a = self.a; X = self.RECV; t = self.t
        for d, o in ((X, L_AG), (self.L1, L_AG + 640)):
            a(f"ds_read_b128 {v(d,4)}, {v(t+2)} offset:{o}\nds_read_b128 {v(d+4,4)}, {v(t+2)} offset:{o+16}\nds_read_b64 {v(d+8,2)}, {v(t+3)} offset:{o}")
        for i in range(4): a(f"ds_read_b64 {v(self.LS+2*i,2)}, {v(t+4)} offset:{L_AG + 1280 + 640*i}")
        a(f"""
        v_lshrrev_b32 {v(X+12)}, 4, {v(VL)}
        s_lshl_b32 s60, {s(S_W)}, 4
        v_lshl_add_u32 {v(X+12)}, {v(X+12)}, 2, s60
        v_cvt_f32_u32 {v(X+12)}, {v(X+12)}
        """)
    def params2(self, g):
        self.cexp(self.LP + 2 * g, self.RECV + 2 * g, v(self.RECV + 12), self.RECV + 14)
    def gemm(self, sync, extras):
        a = self.a
        for step in range(21):
            if step % 2 == 0 and step < 20: sync(step // 2)
            else: a("s_waitcnt lgkmcnt(0)")
            if opt("qst") == 2 and step % 2 == 0: stamp(a, 1 + step // 2, True)
            rd = self.reads(step) if step < 20 else []
            mm = self.mf(step - 1) if step else []
            for i in range(10):
                for x in rd[2*i:2*i+2]: a(x)
                if i < len(mm): a(mm[i])
            for f in extras.get(step, []): f()
    def exchange(self):
        a = self.a; t = self.t + 12
        l1 = a.label("xo"); l2 = a.label("xd")
        a(f"""
        s_mul_i32 s60, {s(S_W)}, 5440
        s_add_u32 s60, s60, {L_XCH}
        v_lshl_add_u32 {v(t)}, {v(VL)}, 4, s60
        s_xor_b32 s60, {s(S_W)}, 1
        s_mul_i32 s60, s60, 5440
        s_add_u32 s60, s60, {L_XCH}
        v_lshl_add_u32 {v(t+1)}, {v(VL)}, 4, s60
        s_nop 1
        """)
        for g in range(4, -1, -1):
            a(f"ds_write_b128 {v(t)}, {v(self.SEND+4*g,4)} offset:{1024*g}")
        self.bar()
        for g in range(5): a(f"ds_read_b128 {v(self.RECV+4*g,4)}, {v(t+1)} offset:{1024*g}")
        a(f"s_bitcmp1_b32 {s(S_W)}, 0\ns_cbranch_scc1 {l1}")
        for par in range(2):
            if par: a(f"{l1}:")
            re, im = (self.KEEP, self.RECV) if par == 0 else (self.RECV, self.KEEP)
            for g in range(5):
                a(f"s_waitcnt lgkmcnt({4-g})")
                for r in range(4):
                    o = 4 * g + (r & 2)
                    a(f"v_pk_mov_b32 {v(self.U+8*g+2*r,2)}, {v(re+o,2)}, {v(im+o,2)} op_sel:[{r&1},{r&1}]")
            if not par: a(f"s_branch {l2}")
        a(f"{l2}:")
    def warm(self):
        a = self.a
        a(f"""
        s_mul_i32 s7, {s(S_CG)}, 160
        s_and_b32 s7, s7, 0xffc0
        s_lshl_b32 s6, s2, 2
        s_add_u32 s6, s6, {s(S_W)}
        s_mul_i32 s6, s6, 800
        s_and_b32 s6, s6, 0xffffffc0
        s_add_u32 s18, {s(P_WO)}, s6
        s_addc_u32 s19, {s(P_WO+1)}, 0
        s_add_u32 s8, {s(P_DSK)}, s7
        s_addc_u32 s9, {s(P_DSK+1)}, 0
        """)
        lst = [(18, 128*i) for i in range(7)] + [(8, 64)] + [(18, 128*i + 64) for i in range(6)]
        for i, (b, o) in enumerate(lst): a(f"s_load_dword s{100 + (i & 1)}, {s(b,2)}, {o}")
    pk = True
    def cf1(self, d, L, h, u):
        if not self.pk: return f"v_fma_f32 {v(d)}, {v(h)}, {v(L)}, {v(u)}\nv_fma_f32 {v(d+1)}, {v(h+1)}, {v(L)}, {v(u+1)}"
        return f"v_pk_fma_f32 {v(d,2)}, {v(h,2)}, {v(L,2)}, {v(u,2)} op_sel:[0,0,0] op_sel_hi:[1,0,1]"
    def cf2(self, d, L, h):
        if not self.pk: return f"v_fma_f32 {v(d)}, {v(h+1)}, -{v(L+1)}, {v(d)}\nv_fmac_f32 {v(d+1)}, {v(h)}, {v(L+1)}"
        return f"v_pk_fma_f32 {v(d,2)}, {v(h,2)}, {v(L,2)}, {v(d,2)} op_sel:[1,1,0] op_sel_hi:[0,1,1] neg_lo:[0,1,0]"
    def cfma(self, d, L, h, u):
        self.a(self.cf1(d, L, h, u)); self.a(self.cf2(d, L, h))
    def cfma5(self, d, L, h, u, hs=2, us=2):
        for g in range(5): self.a(self.cf1(d + 2*g, L + 2*g, h + hs*g, u + us*g))
        for g in range(5): self.a(self.cf2(d + 2*g, L + 2*g, h + hs*g))
    def scan_setup(self):
        a = self.a; t = self.t
        a(f"""
        v_and_b32 {v(t+10)}, 15, {v(VL)}
        v_lshrrev_b32 {v(t+11)}, 4, {v(VL)}
        v_lshlrev_b32 {v(t+2)}, 5, {v(t+10)}
        v_lshlrev_b32 {v(t+3)}, 3, {v(t+10)}
        v_add_u32 {v(t+3)}, 512, {v(t+3)}
        v_mul_u32_u24 {v(t+4)}, 640, {v(t+11)}
        s_mul_i32 s60, {s(S_W)}, 2560
        v_add3_u32 {v(t)}, {v(t+2)}, {v(t+4)}, s60
        v_add3_u32 {v(t+1)}, {v(t+3)}, {v(t+4)}, s60
        s_and_b32 s60, {s(S_W)}, 1
        s_mul_i32 s61, s60, 320
        v_min_u32 {v(t+4)}, 39, {v(VL)}
        v_lshl_add_u32 {v(t+4)}, {v(t+4)}, 3, s61
        s_mul_i32 s61, s60, 384
        v_lshl_add_u32 {v(t+5)}, {v(VL)}, 3, s61
        s_mul_i32 s60, {s(S_W)}, 5440
        s_add_u32 s60, s60, {L_BRED}
        v_mul_u32_u24 {v(t+6)}, 272, {v(t+10)}
        v_lshl_add_u32 {v(t+6)}, {v(t+11)}, 6, {v(t+6)}
        v_add_u32 {v(t+6)}, s60, {v(t+6)}
        v_lshrrev_b32 {v(t+7)}, 2, {v(t+10)}
        v_mul_u32_u24 {v(t+7)}, 272, {v(t+7)}
        v_lshl_add_u32 {v(t+7)}, {v(t+11)}, 6, {v(t+7)}
        v_and_b32 {v(t+8)}, 3, {v(VL)}
        v_lshl_add_u32 {v(t+7)}, {v(t+8)}, 2, {v(t+7)}
        v_add_u32 {v(t+7)}, s60, {v(t+7)}
        v_mul_u32_u24 {v(t+8)}, 272, {v(t+11)}
        v_lshl_add_u32 {v(t+8)}, {v(t+10)}, 4, {v(t+8)}
        v_add_u32 {v(t+8)}, s60, {v(t+8)}
        s_lshl_b32 s60, {s(S_TC)}, 2
        s_add_u32 s60, s60, {s(S_W)}
        s_mul_i32 s60, s60, {HREC}
        s_mul_i32 s61, {s(S_CG)}, {20*256}
        s_add_u32 s60, s60, s61
        s_add_u32 s60, s60, {WS_H}
        v_lshl_add_u32 {v(t+9)}, {v(VL)}, 4, s60
        """)
    def scan1(self):
        self.pk = opt("pk", 15) & 1
        a = self.a; t = self.t; X = self.X
        A0, A1 = X, X + 12
        self.cfma5(A0, self.L1, self.U, self.U + 2, 8, 8)
        self.cfma5(A1, self.L1, A0, self.U + 4, 2, 8)
        self.cfma5(A0, self.L1, A1, self.U + 6, 2, 8)
        a(f"""
        ds_write_b128 {v(t)}, {v(A0,4)} offset:{L_AG}
        ds_write_b128 {v(t)}, {v(A0+4,4)} offset:{L_AG+16}
        ds_write_b64 {v(t+1)}, {v(A0+8,2)} offset:{L_AG}
        """)
        self.bar()
    def serial(self, idle_fn):
        a = self.a; t = self.t; X = self.X; Y = self.Y
        lb = a.label("lookback"); d1 = a.label("ser1"); d2 = a.label("ser2"); d3 = a.label("ser3")
        ms = opt("msleep", 8)
        self.pk = opt("pk", 15) & 2
        a(f"""
        s_mul_i32 s62, {s(S_CG)}, {64*FSTR}
        s_add_u32 s62, s62, {FL_AGG}
        s_mul_i32 s63, {s(S_CG)}, 24576
        s_add_u32 s63, s63, {WS_AGG}
        v_mov_b32 {v(t+12)}, 0
        v_mov_b32 {v(t+13)}, 0
        s_cmp_ge_u32 {s(S_W)}, 2
        s_cbranch_scc1 {lb}
        """)
        for sg in range(16):
            a(f"ds_read_b64 {v(X+2*sg,2)}, {v(t+4)} offset:{L_AG + 640*sg}")
        a("s_waitcnt lgkmcnt(0)")
        for sg in range(1, 16):
            self.cfma(X+2*sg, self.LS, X+2*sg-2, X+2*sg)
        a(f"""
        s_sub_u32 s61, 31, {s(S_TC)}
        s_mul_i32 s61, s61, 768
        s_add_u32 s61, s61, s63
        s_mov_b32 exec_hi, 0xffff
        buffer_store_dwordx2 {v(X+30,2)}, {v(t+5)}, {s(SW,4)}, s61 offen sc1
        s_mov_b32 exec_hi, -1
        s_lshl_b32 s61, {s(S_TC)}, 1
        s_add_u32 s61, s61, {s(S_W)}
        s_mul_i32 s61, s61, {FSTR}
        s_add_u32 s62, s62, s61
        ds_write_b64 {v(t+4)}, {v(t+12,2)} offset:{L_AG}
        """)
        for sg in range(15):
            a(f"ds_write_b64 {v(t+4)}, {v(X+2*sg,2)} offset:{L_AG + 640*(sg+1)}")
        a("s_waitcnt vmcnt(0)")
        set_flag(a, 62, t + 14)
        if not opt("nocraw"): self.craw_load()
        idle_fn()
        a("s_waitcnt vmcnt(0)")
        a(f"s_branch {d1}\n{lb}:")
        idle_fn()
        a(f"""
        s_cmp_eq_u32 {s(S_TC)}, 0
        s_cbranch_scc1 {d1}
        s_cmp_eq_u32 {s(S_W)}, 3
        s_cbranch_scc1 {d1}
        s_lshl_b32 s61, {s(S_TC)}, 1
        s_sub_u32 s61, s61, 1
        v_min_u32 {v(t+14)}, s61, {v(VL)}
        v_mul_u32_u24 {v(t+14)}, {FSTR}, {v(t+14)}
        v_add_u32 {v(t+14)}, s62, {v(t+14)}
        """)
        poll(a, t + 14, t + 15, sleep=ms)
        a(f"{d1}:")
        self.bar(sleep=ms)
        stamp(a, 11)
        a(f"""
        s_add_u32 s52, {s(P_WS)}, s63
        s_addc_u32 s53, {s(P_WS+1)}, 0
        s_mov_b32 s54, 24576
        s_mov_b32 s55, 0x00020000
        s_lshr_b32 s61, {s(S_W)}, 1
        s_lshl_b32 s61, s61, 4
        s_add_u32 s61, s61, 32
        s_sub_u32 s61, s61, {s(S_TC)}
        s_mul_i32 s61, s61, 768
        v_add_u32 {v(t+12)}, s61, {v(t+5)}
        v_add_u32 {v(t+13)}, 3072, {v(t+12)}
        v_add_u32 {v(t+14)}, 6144, {v(t+12)}
        v_add_u32 {v(t+15)}, 9216, {v(t+12)}
        s_mov_b32 exec_hi, 0xff
        """)
        order = [j for k in range(7, -1, -1) for j in (8 + k, k)]
        if opt("lbprio0"): a("s_setprio 0")
        for n, j in enumerate(order):
            if opt("lbwin") and n >= opt("lbwin"): a(f"s_waitcnt vmcnt({opt('lbwin')-1})")
            if opt("nolb"): continue
            a(f"buffer_load_dwordx2 {v(Y+2*j,2)}, {v(t+12+j//4)}, s[52:55], 0 offen offset:{768*(j%4)} sc1")
        a("s_mov_b32 exec_hi, -1\ns_setprio 3")
        self.cprep_calc()
        a("s_waitcnt vmcnt(2)")
        self.pk = opt("pk", 15) & 4
        L64, L512, L1024 = self.LS + 2, self.LS + 4, self.LS + 6
        for k in range(6, -1, -1):
            for j in (8 + k, k): a(self.cf1(Y + 2*j, L64, Y + 2*j + 2, Y + 2*j))
            for j in (8 + k, k): a(self.cf2(Y + 2*j, L64, Y + 2*j + 2))
        self.cfma(Y, L512, Y + 16, Y)
        a(f"""
        s_cmp_lt_u32 {s(S_W)}, 2
        s_mov_b32 exec_hi, 0xff
        s_cbranch_scc0 {d2}
        ds_write_b64 {v(t+4)}, {v(Y,2)} offset:{L_CIN}
        s_branch {d3}
        {d2}:
        v_pk_mul_f32 {v(Y+2,2)}, {v(Y,2)}, {v(L1024,2)} op_sel:[0,0] op_sel_hi:[1,0]
        {self.cf2(Y + 2, L1024, Y)}
        ds_write_b64 {v(t+4)}, {v(Y+2,2)} offset:{L_CIN + 640}
        {d3}:
        s_mov_b32 exec_hi, -1
        """)
        self.bar(sleep=1)
    def scan2(self):
        self.pk = opt("pk", 15) & 8
        a = self.a; t = self.t; X = self.X
        PRE, CI, H0, H1 = X, X + 12, X + 24, X
        P = self.Y
        a(f"""
        ds_read_b128 {v(PRE,4)}, {v(t)} offset:{L_AG}
        ds_read_b128 {v(PRE+4,4)}, {v(t)} offset:{L_AG+16}
        ds_read_b64 {v(PRE+8,2)}, {v(t+1)} offset:{L_AG}
        ds_read_b128 {v(CI,4)}, {v(t+2)} offset:{L_CIN}
        ds_read_b128 {v(CI+4,4)}, {v(t+2)} offset:{L_CIN+16}
        ds_read_b64 {v(CI+8,2)}, {v(t+3)} offset:{L_CIN}
        ds_read_b128 {v(H0,4)}, {v(t+2)} offset:{L_CIN+640}
        ds_read_b128 {v(H0+4,4)}, {v(t+2)} offset:{L_CIN+640+16}
        ds_read_b64 {v(H0+8,2)}, {v(t+3)} offset:{L_CIN+640}
        s_waitcnt lgkmcnt(0)
        """)
        for g in range(5): a(f"v_pk_add_f32 {v(CI+2*g,2)}, {v(CI+2*g,2)}, {v(H0+2*g,2)}")
        self.cfma5(H0, self.LP, CI, PRE)
        src, dst = H0, H1
        for r in range(4):
            self.cfma5(dst, self.L1, src, self.U + 2*r, 2, 8)
            for g in range(5):
                p = P + 4 * r + g if g < 4 else P + 16 + r
                a(f"v_cvt_pk_bf16_f32 {v(p)}, {v(dst+2*g)}, {v(dst+2*g+1)}")
            a(f"ds_write_b128 {v(t+6)}, {v(P+4*r,4)} offset:{16*r}")
            a(f"ds_write_b32 {v(t+7)}, {v(P+16+r)} offset:{16*272 + 16*r}")
            src, dst = dst, src
        Z = self.Y + 20
        for i in range(5):
            a(f"ds_read_b128 {v(Z+4*i,4)}, {v(t+8)} offset:{4*272*i}")
        a("s_movk_i32 s60, 0x1000")
        for i in range(5):
            a(f"s_waitcnt lgkmcnt({4-i})")
            if opt("hwin"): a(f"s_waitcnt vmcnt({opt('hwin')-1})")
            if not opt("nohst"): a(f"buffer_store_dwordx4 {v(Z+4*i,4)}, {v(t+9)}, {s(SW,4)}, {'0' if i < 4 else 's60'} offen offset:{1024*(i%4)} sc1")

class Params1(B1):
    def __init__(self, a, X):
        self.a = a; self.X = X; self.SX2 = 48
    def params_load(self):
        a = self.a; X = self.X
        a(f"""
        s_mul_i32 s60, {s(S_CG)}, 160
        s_and_b32 s61, {s(S_W)}, 1
        s_mul_i32 s61, s61, 80
        s_add_u32 s61, s61, s60
        v_min_u32 v6, 39, {v(VL)}
        s_and_b32 s60, {s(S_W)}, 1
        s_mul_i32 s60, s60, 320
        v_lshl_add_u32 {v(X+3)}, v6, 3, s60
        v_lshl_add_u32 v6, v6, 1, s61
        """)
        for j, P in enumerate((P_LRE, P_LIM, P_LDT)):
            a.srd(self.SX2, P, 1280)
            a(f"buffer_load_ushort {v(X+j)}, v6, {s(self.SX2,4)}, 0 offen")
    def params1(self):
        a = self.a; X = self.X; lr, li, ld, z, Lb, k, t = X, X + 1, X + 2, X + 4, X + 6, X + 8, X + 10
        a(f"""
        v_lshlrev_b32 {v(ld)}, 16, {v(ld)}
        v_mul_f32 {v(ld)}, {LOG2E}, {v(ld)}
        v_exp_f32 {v(ld)}, {v(ld)}
        v_lshlrev_b32 {v(lr)}, 16, {v(lr)}
        v_lshlrev_b32 {v(li)}, 16, {v(li)}
        v_cvt_pk_bf16_f32 {v(ld)}, {v(ld)}, {v(ld)}
        v_and_b32 {v(ld)}, 0xffff0000, {v(ld)}
        v_mul_f32 {v(z)}, {v(ld)}, {v(lr)}
        v_mul_f32 {v(z+1)}, {v(ld)}, {v(li)}
        v_mul_f32 {v(z)}, {LOG2E}, {v(z)}
        v_mul_f32 {v(z+1)}, {INV2PI}, {v(z+1)}
        ds_write_b64 {v(self.X+3)}, {v(z,2)} offset:{L_AG}
        """)
        for i, mul in enumerate((4.0, 64.0, 512.0, 1024.0)):
            self.cexp(X + 12 + 2 * i, z, hex(f2u(mul)), t)
            a(f"ds_write_b64 {v(self.X+3)}, {v(X+12+2*i,2)} offset:{L_AG + 1280 + 640*i}")
        self.cexp(Lb, z, None, t)
        a(f"""
        ds_write_b64 {v(self.X+3)}, {v(Lb,2)} offset:{L_AG + 640}
        v_mul_f32 {v(t)}, {v(lr)}, {v(lr)}
        v_fmac_f32 {v(t)}, {v(li)}, {v(li)}
        v_rcp_f32 {v(t)}, {v(t)}
        v_add_f32 {v(t+1)}, -1.0, {v(Lb)}
        v_mul_f32 {v(k)}, {v(t+1)}, {v(lr)}
        v_fmac_f32 {v(k)}, {v(Lb+1)}, {v(li)}
        v_mul_f32 {v(k+1)}, {v(Lb+1)}, {v(lr)}
        v_fma_f32 {v(k+1)}, -{v(t+1)}, {v(li)}, {v(k+1)}
        v_add_f32 {v(t)}, {v(t)}, {v(t)}
        v_mul_f32 {v(k)}, {v(k)}, {v(t)}
        v_mul_f32 {v(k+1)}, {v(k+1)}, {v(t)}
        ds_write_b64 {v(self.X+3)}, {v(k,2)} offset:{L_COEF}
        """)

def padd(a, d, x):
    if opt("epk", 1): a(f"v_pk_add_f32 {v(d,2)}, {v(d,2)}, {v(x,2)}")
    else: a(f"v_add_f32 {v(d)}, {v(d)}, {v(x)}\nv_add_f32 {v(d+1)}, {v(d+1)}, {v(x+1)}")
class B2:
    NR = 4
    def __init__(self, a, bar):
        self.a = a; self.bar = bar
        R = Regs(8)
        self.vc = R.alloc("vc", 9)
        self.wo = R.alloc("wo", 5)
        self.pa = R.alloc("pa", 1)
        assert R.next <= 24
        R.next = 28
        self.acc = R.alloc("acc", 80, 4)
        self.F = [R.alloc(f"F{i}", 36, 4) for i in range(self.NR)]
        self.t = 8
        self.SO, self.ST, self.SWO = 48, 52, 48
    def setup(self):
        a = self.a; vc = self.vc
        a(f"""
        s_mul_i32 s60, {s(S_W)}, {40*256}
        s_mul_i32 s61, {s(S_CG)}, {5*HREC}
        s_add_u32 s61, s61, s60
        s_add_u32 s61, s61, {WS_C}
        v_lshl_add_u32 {v(vc)}, {v(VL)}, 4, s61
        s_mul_i32 s61, {s(S_TC)}, {4*HREC}
        s_add_u32 s61, s61, s60
        s_add_u32 s61, s61, {WS_H}
        v_lshl_add_u32 {v(vc+5)}, {v(VL)}, 4, s61
        """)
        for i in range(1, 5): a(f"v_add_u32 {v(vc+i)}, {i*HREC}, {v(vc)}")
        for i in range(1, 4): a(f"v_add_u32 {v(vc+5+i)}, {i*HREC}, {v(vc+5)}")
    def poll_addr(self):
        a = self.a; t = self.pa
        a(f"""
        v_lshrrev_b32 v6, 1, {v(VL)}
        s_lshl_b32 s60, {s(S_CG)}, 2
        v_add_u32 v7, s60, v6
        v_cmp_gt_u32 vcc, 4, v6
        v_mov_b32 v6, {s(S_TC)}
        s_lshl_b32 s60, {s(S_W)}, 1
        v_cndmask_b32 v6, v6, v7, vcc
        v_lshl_add_u32 v6, v6, 3, s60
        v_and_b32 v7, 1, {v(VL)}
        v_add_u32 v6, v6, v7
        v_mul_u32_u24 v6, {FSTR}, v6
        v_add_u32 {v(t)}, {FL_H}, v6
        """)
    def poll(self):
        a = self.a
        a("s_mov_b64 exec, 0x3ff")
        poll(a, self.pa, 6, sleep=opt("msleep", 8))
        a("s_mov_b64 exec, -1")
    def ld(self, step):
        F = self.F[step % self.NR]
        out = ["s_lshl_b32 s60, s40, 10"]
        out += [f"buffer_load_dwordx4 {v(F+4*i,4)}, {v(self.vc+i)}, {s(SW,4)}, s60 offen sc1" for i in range(9)]
        out += ["s_add_u32 s40, s40, 1\ns_cmp_eq_u32 s40, 10\ns_cselect_b32 s40, 0, s40"]
        return out
    def wo_group(self, g):
        vo = self.wo; S = s(self.SWO, 4)
        out = [f"s_add_u32 m0, s11, {L_WO + g*20480}\ns_add_u32 s6, s10, {g*128*1280}"]
        out += [f"buffer_load_dwordx4 {v(vo+i)}, {S}, s6 offen offset:{1024*i} lds" for i in range(4)]
        out += [f"s_add_u32 m0, s11, {L_WO + g*20480 + 4096}\ns_nop 0", f"buffer_load_dwordx4 {v(vo+4)}, {S}, s6 offen lds"]
        return out
    def wo_setup(self):
        self.a(f"""
        s_lshr_b32 s10, s2, 5
        s_mul_i32 s10, s10, 160
        s_mul_i32 s11, {s(S_W)}, {32*1280}
        s_add_u32 s10, s10, s11
        s_mul_i32 s11, {s(S_W)}, 5120
        """)
    def wo_paced(self, groups):
        a = self.a; W = opt("wwin", 5)
        for g in groups:
            for x in self.wo_group(g):
                if x.startswith("buffer"): a(f"s_waitcnt vmcnt({W-1})")
                a(x)
    def gemm(self, gate_fn):
        a = self.a; NR = self.NR; U = opt("ungated", 6); W = [opt("win", 6)]
        pend = [(st, x) for st in range(10) for x in self.ld(st)]
        g0 = gate_fn
        def gate_fn():
            self.wo_paced(self.wo_rest)
            a("s_waitcnt vmcnt(0)\ns_setprio 3"); self.bar.arrive(); self.G_WO = self.bar.n; a(f"s_setprio {opt('gprio2', 0)}")
            if opt("qst") == 3: stamp(a, 10, True)
            g0()
        cnt = [0]; done = {}
        def emit(limit):
            while pend and pend[0][0] <= limit:
                st, x = pend.pop(0)
                if x.startswith("buffer"):
                    if W[0] < 40: a(f"s_waitcnt vmcnt({W[0]-1})")
                    a(x); cnt[0] += 1; done[st] = cnt[0]
                    return True
                a(x)
            return False
        if opt("qst") == 3: stamp(a, 1, True)
        for st in range(10):
            while emit(st): pass
            if st == U:
                if opt("qst") == 3: stamp(a, 8, True)
                while emit(st + NR - 1): pass
                if opt("qst") == 3: stamp(a, 9, True)
                gate_fn()
                W[0] = opt("win2", 9)
            a(f"s_waitcnt vmcnt({cnt[0] - done[st]})")
            if opt("qst") == 3 and st < 7: stamp(a, 2 + st if st < U else 11, True)
            F = self.F[st % NR]; n = 0
            for tt in range(4):
                for i in (range(5) if tt % 2 == 0 else range(4, -1, -1)):
                    d = self.acc + 20 * tt + 4 * i
                    a(f"v_mfma_f32_16x16x32_bf16 {v(d,4)}, {v(F+4*i,4)}, {v(F+20+4*tt,4)}, {'0' if st == 0 else v(d,4)}")
                    n += 1
                    if n % 3: emit(st + NR - 1)
    def epi(self):
        a = self.a; t = self.t; acc = self.acc
        E = self.F[2]; Z = self.F[0]
        a.srd(self.ST, P_BX, 2048 * 1280)
        a.srd(self.SO, P_DSK, 1280)
        a(f"""
        s_lshl_b32 s60, {s(S_TC)}, 2
        s_add_u32 s60, s60, {s(S_W)}
        s_mul_i32 s61, s60, {16*1280}
        s_mul_i32 s62, {s(S_CG)}, 160
        s_add_u32 s61, s61, s62
        s_mul_i32 s63, s60, {16*5120}
        s_lshl_b32 s6, s62, 1
        s_add_u32 s63, s63, s6
        s_add_u32 s63, s63, 2560
        v_and_b32 {v(t)}, 15, {v(VL)}
        v_lshrrev_b32 {v(t+1)}, 4, {v(VL)}
        v_lshlrev_b32 {v(t+2)}, 3, {v(t+1)}
        v_mul_u32_u24 {v(t+3)}, 1280, {v(t)}
        v_add_u32 {v(t+3)}, {v(t+3)}, {v(t+2)}
        """)
        for i in range(5):
            a(f"buffer_load_dwordx2 {v(E+2*i,2)}, {v(t+3)}, {s(self.ST,4)}, s61 offen offset:{32*i}")
            a(f"buffer_load_dwordx2 {v(E+10+2*i,2)}, {v(t+2)}, {s(self.SO,4)}, s62 offen offset:{32*i}")
        a.srd(self.SO, P_OUT, 2048 * 5120)
        l1 = a.label("b2a"); l2 = a.label("b2b"); l3 = a.label("b2c"); l4 = a.label("b2d")
        a(f"""
        v_mul_u32_u24 {v(t+3)}, 5120, {v(t)}
        v_lshl_add_u32 {v(t+3)}, {v(t+1)}, 4, {v(t+3)}
        s_mul_i32 s60, {s(S_W)}, 10240
        s_add_u32 s60, s60, {L_BRED}
        v_lshl_add_u32 {v(t)}, {v(VL)}, 4, s60
        s_xor_b32 s60, {s(S_W)}, 1
        s_mul_i32 s60, s60, 10240
        s_add_u32 s60, s60, {L_BRED}
        v_lshl_add_u32 {v(t+1)}, {v(VL)}, 4, s60
        s_xor_b32 s60, {s(S_W)}, 3
        s_mul_i32 s60, s60, 10240
        s_add_u32 s60, s60, {L_BRED}
        v_lshl_add_u32 {v(t+2)}, {v(VL)}, 4, s60
        s_bitcmp1_b32 {s(S_W)}, 0
        s_cbranch_scc1 {l1}
        """)
        for par in range(2):
            if par: a(f"{l1}:")
            for u in range(2):
                for i in range(5):
                    a(f"ds_write_b128 {v(t)}, {v(acc + 20*(2*u + 1 - par) + 4*i,4)} offset:{1024*(5*u+i)}")
            self.bar(count=(par == 0))
            for k in range(10):
                a(f"ds_read_b128 {v(Z+4*k,4)}, {v(t+1)} offset:{1024*k}")
            for k in range(10):
                u, i = divmod(k, 5)
                a(f"s_waitcnt lgkmcnt({9-k})")
                for r in (0, 2): padd(a, Z+4*k+r, acc + 20*(2*u + par) + 4*i + r)
            if not par: a(f"s_branch {l2}")
        a(f"{l2}:\ns_bitcmp1_b32 {s(S_W)}, 1\ns_cbranch_scc1 {l3}")
        for hi in range(2):
            if hi: a(f"{l3}:")
            for i in range(5):
                a(f"ds_write_b128 {v(t+1)}, {v(Z + 20*(1-hi) + 4*i,4)} offset:{1024*i}")
            self.bar(count=(hi == 0))
            for i in range(5):
                a(f"ds_read_b128 {v(acc+4*i,4)}, {v(t+2)} offset:{1024*i}")
            a("s_waitcnt vmcnt(0)")
            late = []
            for i in range(5):
                for r in (0, 2):
                    x = E + 2 * i + (r >> 1); d = x + 10
                    a(f"v_lshlrev_b32 {v(t+4)}, 16, {v(x)}\nv_and_b32 {v(t+5)}, 0xffff0000, {v(x)}")
                    a(f"v_lshlrev_b32 {v(t+6)}, 16, {v(d)}\nv_and_b32 {v(t+7)}, 0xffff0000, {v(d)}")
                    if opt("epk", 1): a(f"v_pk_fma_f32 {v(Z+20*hi+4*i+r,2)}, {v(t+4,2)}, {v(t+6,2)}, {v(Z+20*hi+4*i+r,2)}")
                    else: a(f"v_fmac_f32 {v(Z+20*hi+4*i+r)}, {v(t+4)}, {v(t+6)}\nv_fmac_f32 {v(Z+20*hi+4*i+r+1)}, {v(t+5)}, {v(t+7)}")
                a(f"s_waitcnt lgkmcnt({4-i})")
                for r in (0, 2): padd(a, acc+4*i+r, Z+20*hi+4*i+r)
                x = f"buffer_store_dwordx4 {v(acc+4*i,4)}, {v(t+3)}, {s(self.SO,4)}, s63 offen offset:{64*i} {OPT.get('ob','sc1').replace('+',' ')}"
                if opt("obgate", 5): late.append(x)
                else: a(x)
            if not hi: a(f"s_branch {l4}")
        a(f"{l4}:")
        if late:
            a(f"v_subrev_u32 v6, 16, {v(VBR)}")
            lds_wait(a, str(opt("obgate", 5)), addr=6, sleep=2)
            for x in late: a(x)
```

```python
from fcommon import *
S_TC, S_CG, S_I0, S_I1 = 38, 39, 42, 43

class Loader:
    def __init__(self, a, base):
        self.a = a
        self.vx = base; self.vw = base + 4; self.vb = base + 8; self.t = base + 16
        self.SX, self.SB = 48, 88 if not STAMPS else 92
    def ld_valu(self):
        a = self.a; t = self.t; vx = self.vx; vw = self.vw
        a(f"""
        v_lshrrev_b32 {v(t)}, 3, {v(VL)}
        v_mul_u32_u24 {v(t)}, 1280, {v(t)}
        v_lshrrev_b32 {v(t+1)}, 4, {v(VL)}
        v_and_b32 {v(t+2)}, 7, {v(VL)}
        v_xor_b32 {v(t+2)}, {v(t+2)}, {v(t+1)}
        v_lshl_add_u32 {v(t+3)}, {v(t+2)}, 4, {v(t)}
        s_lshl_b32 s60, {s(S_I0)}, 2
        s_add_u32 s60, s60, {s(S_W)}
        s_mul_i32 s60, s60, {32*1280}
        v_add_u32 {v(vx)}, s60, {v(t+3)}
        v_xor_b32 {v(vx+1)}, 64, {v(vx)}
        v_add_u32 {v(vx+2)}, {2*(8*1280-1024)}, {v(vx)}
        v_add_u32 {v(vx+3)}, {3*(8*1280-1024)}, {v(vx+1)}
        v_add_u32 {v(vx+1)}, {1*(8*1280-1024)}, {v(vx+1)}
        v_mul_u32_u24 {v(t)}, 3840, {v(t+1)}
        v_lshlrev_b32 {v(t+1)}, 1, {v(t+1)}
        v_and_b32 {v(t+2)}, 15, {v(VL)}
        v_xor_b32 {v(t+2)}, {v(t+2)}, {v(t+1)}
        v_lshl_add_u32 {v(t+3)}, {v(t+2)}, 4, {v(t)}
        s_mul_i32 s60, {s(S_W)}, {16*3840}
        s_lshl_b32 s61, {s(S_I1)}, 8
        s_add_u32 s60, s60, s61
        v_add_u32 {v(vw)}, s60, {v(t+3)}
        v_xor_b32 {v(vw+2)}, 0x80, {v(vw)}
        v_add_u32 {v(vw+1)}, {1*(4*3840-1024)}, {v(vw)}
        v_add_u32 {v(vw+3)}, {3*(4*3840-1024)}, {v(vw+2)}
        v_add_u32 {v(vw+2)}, {2*(4*3840-1024)}, {v(vw+2)}
        s_and_b32 s62, {s(S_I0)}, 3
        s_mul_i32 s62, s62, 3
        s_add_u32 s62, s62, {s(S_I1)}
        s_mul_i32 s60, s62, 205
        s_lshr_b32 s60, s60, 11
        s_mul_i32 s60, s60, 10
        s_sub_u32 s62, s62, s60
        s_lshl_b32 s63, {s(S_W)}, 12
        """)
        if opt("norot"): a("s_mov_b32 s62, 0")
        if opt("rot") == 2: a(f"s_add_u32 s62, {s(S_I0)}, {s(S_I1)}\ns_and_b32 s62, s62, 1\ns_mul_i32 s62, s62, 5")
        if opt("rot") == 4: a(f"s_add_u32 s62, {s(S_I0)}, {s(S_I1)}\ns_and_b32 s62, s62, 3\ns_mul_i32 s62, s62, 5\ns_lshr_b32 s62, s62, 1")
        if opt("rot") == 5: a(f"s_add_u32 s62, {s(S_I0)}, {s(S_I1)}\ns_and_b32 s62, s62, 3")
    def ld_srd(self, s_idle):
        a = self.a
        a(f"""
        s_mov_b32 {s(self.SX)}, {s(P_AX)}
        s_mov_b32 {s(self.SX+1)}, {s(P_AX+1)}
        s_mov_b32 {s(self.SX+3)}, 0x00020000
        s_mov_b32 {s(self.SB)}, {s(P_WQKV)}
        s_mov_b32 {s(self.SB+1)}, {s(P_WQKV+1)}
        s_mov_b32 {s(self.SB+3)}, 0x00020000
        s_cmp_eq_u32 {s(s_idle)}, 0
        s_cselect_b32 {s(self.SX+2)}, {2048*1280}, 0
        s_cselect_b32 {s(self.SB+2)}, {640*3840}, 0
        """)
    def ld_issue(self, st):
        a = self.a; base = L_RING + (st % 3) * 32768
        a(f"s_add_u32 m0, s63, {base}\ns_lshl_b32 s60, s62, 7")
        for i in range(4):
            a(f"buffer_load_dwordx4 {v(self.vx+i)}, {s(self.SX,4)}, s60 offen offset:{1024*i} lds")
        a(f"s_add_u32 m0, s63, {base+16384}\ns_mul_i32 s60, s62, {64*3840}")
        for i in range(4):
            a(f"buffer_load_dwordx4 {v(self.vw+i)}, {s(self.SB,4)}, s60 offen offset:{1024*i} lds")
        a("s_add_u32 s62, s62, 1\ns_cmp_eq_u32 s62, 10\ns_cselect_b32 s62, 0, s62")
    def b1_setup(self):
        a = self.a; t = self.t; vb = self.vb
        a(f"""
        s_and_b32 s60, {s(S_W)}, 1
        s_lshr_b32 s61, {s(S_W)}, 1
        v_lshrrev_b32 {v(t)}, 3, {v(VL)}
        v_lshrrev_b32 {v(t+1)}, 4, {v(VL)}
        v_and_b32 {v(t+2)}, 7, {v(VL)}
        v_xor_b32 {v(t+2)}, {v(t+2)}, {v(t+1)}
        v_lshlrev_b32 {v(t+2)}, 4, {v(t+2)}
        s_lshl_b32 s6, s61, 6
        v_xor_b32 {v(t+3)}, s6, {v(t+2)}
        s_lshl_b32 s6, s61, 3
        v_add_u32 {v(t+8)}, s6, {v(t)}
        s_mul_i32 s6, {s(S_CG)}, {80*1280}
        v_add_u32 {v(t+3)}, s6, {v(t+3)}
        v_mul_u32_u24 {v(t+5)}, {4*1280}, {v(t+8)}
        v_add_u32 {v(vb)}, {v(t+5)}, {v(t+3)}
        v_add_u32 {v(vb+1)}, {1*(1280-1024)}, {v(vb)}
        v_add_u32 {v(vb+2)}, {2*(1280-1024)}, {v(vb)}
        v_add_u32 {v(vb+3)}, {3*(1280-1024)}, {v(vb)}
        v_mul_u32_u24 {v(t+5)}, 1280, {v(t+8)}
        v_add_u32 {v(t+5)}, {64*1280}, {v(t+5)}
        v_add_u32 {v(vb+4)}, {v(t+5)}, {v(t+3)}
        s_lshl_b32 s6, {s(S_TC)}, 2
        s_add_u32 s6, s6, {s(S_W)}
        s_mul_i32 s6, s6, {16*1280}
        v_mul_u32_u24 {v(t+5)}, 1280, {v(t)}
        v_add3_u32 {v(vb+5)}, {v(t+5)}, {v(t+2)}, s6
        v_xor_b32 {v(vb+6)}, 64, {v(vb+5)}
        v_add_u32 {v(vb+6)}, {8*1280-1024}, {v(vb+6)}
        s_lshl_b32 s41, s60, 1
        s_add_u32 s41, s41, s61
        s_mul_i32 s41, s41, 7168
        s_and_b32 s40, {s(S_CG)}, 3
        s_mul_i32 s40, s40, 3
        s_and_b32 s6, {s(S_TC)}, 7
        s_add_u32 s40, s40, s6
        s_sub_u32 s6, s40, 10
        s_cmp_ge_u32 s40, 10
        s_cselect_b32 s40, s6, s40
        """)
    def b1_srd(self):
        a = self.a
        a.srd(self.SX, P_BX, 2048 * 1280)
        a(f"""
        s_bitcmp0_b32 {s(S_W)}, 0
        s_cselect_b32 {s(self.SB)}, {s(P_BRE)}, {s(P_BIM)}
        s_cselect_b32 {s(self.SB+1)}, {s(P_BRE+1)}, {s(P_BIM+1)}
        s_mov_b32 {s(self.SB+2)}, {640*1280}
        """)
    def b1_issue(self, st):
        a = self.a; vb = self.vb; base = L_RING + ((st + 1) % 3) * 32768
        a(f"s_add_u32 m0, s41, {base}\ns_lshl_b32 s60, s40, 7")
        for g in range(4):
            a(f"buffer_load_dwordx4 {v(vb+g)}, {s(self.SB,4)}, s60 offen offset:{1024*g} lds")
        a(f"s_add_u32 m0, s41, {base+4096}\ns_add_u32 s40, s40, 1")
        a(f"buffer_load_dwordx4 {v(vb+4)}, {s(self.SB,4)}, s60 offen lds")
        a(f"s_add_u32 m0, s41, {base+5120}\ns_cmp_eq_u32 s40, 10\ns_cselect_b32 s40, 0, s40")
        a(f"buffer_load_dwordx4 {v(vb+5)}, {s(self.SX,4)}, s60 offen lds")
        a(f"buffer_load_dwordx4 {v(vb+6)}, {s(self.SX,4)}, s60 offen offset:1024 lds")
    def pf_setup(self):
        a = self.a
        a(f"""
        s_lshr_b32 s60, s2, 3
        s_lshl_b32 s60, s60, 2
        s_add_u32 s60, s60, {s(S_W)}
        s_and_b32 s61, s2, 7
        s_mul_i32 s6, s61, 327680
        s_mul_i32 s7, s60, 2560
        s_add_u32 s6, s6, s7
        s_add_u32 s16, {s(P_BX)}, s6
        s_addc_u32 s17, {s(P_BX+1)}, 0
        s_and_b32 s6, s61, 1
        s_lshl_b32 s6, s6, 2
        s_lshr_b32 s61, s61, 1
        s_add_u32 s6, s6, s61
        s_mul_i32 s6, s6, 102400
        s_and_b32 s7, s60, 63
        s_mul_i32 s7, s7, 1600
        s_add_u32 s6, s6, s7
        s_cmp_lt_u32 s60, 64
        s_cselect_b32 s18, {s(P_BRE)}, {s(P_BIM)}
        s_cselect_b32 s19, {s(P_BRE+1)}, {s(P_BIM+1)}
        s_add_u32 s18, s18, s6
        s_addc_u32 s19, s19, 0
        s_mul_i32 s6, {s(S_TC)}, 5
        s_lshr_b32 s6, s6, 2
        s_lshr_b32 s7, {s(S_W)}, 1
        s_add_u32 s6, s6, s7
        s_mul_i32 s6, s6, {16*1280}
        s_mul_i32 s7, {s(S_CG)}, 160
        s_and_b32 s7, s7, 0xffc0
        s_add_u32 s6, s6, s7
        s_bitcmp0_b32 {s(S_W)}, 0
        s_cselect_b32 s28, {s(P_CRE)}, {s(P_CIM)}
        s_cselect_b32 s29, {s(P_CRE+1)}, {s(P_CIM+1)}
        s_add_u32 s28, s28, s6
        s_addc_u32 s29, s29, 0
        """)
        self.pf1 = ([(16, 128*i) for i in range(20)] + [(18, 128*i) for i in range(13)]
                    + [(16, 128*i + 64) for i in range(20)] + [(18, 128*i + 64) for i in range(12)])
        self.pf2 = [(28, 1280*r + 64*k) for k in (0, 2, 1) for r in range(16)]
    def pf(self, lst):
        for i, (b, o) in enumerate(lst): self.a(f"s_load_dword s{100 + (i & 1)}, {s(b,2)}, {o}")

NSL = 4
class A2:
    def __init__(self, a, bar):
        self.a = a; self.bar = bar
        R = Regs(8)
        self.vK0 = R.alloc("vK0"); self.vK1 = R.alloc("vK1"); self.vV0 = R.alloc("vV0"); self.vV1 = R.alloc("vV1")
        self.idx = R.alloc("idx"); self.t = R.alloc("t", 8, 4)
        self.Q = [R.alloc(f"Q{b}", 6) for b in range(4)]
        self.K = [R.alloc(f"K{i}", 6) for i in range(NSL)]
        self.V = [R.alloc(f"V{i}", 8) for i in range(NSL)]
        self.S = [R.alloc(f"S{b}", 16) for b in range(4)]
        self.O = [R.alloc(f"O{b}", 16) for b in range(4)]
        self.M = R.alloc("M", 4)
        self.wo = R.alloc("wo", 8)
        self.sK, self.sK0, self.sCnt, self.sTry = 52, 53, 54, 55
    def setup(self):
        a = self.a; t = self.t
        a(f"""
        s_and_b32 s56, {s(S_W)}, 1
        s_lshr_b32 s57, {s(S_W)}, 1
        s_mul_i32 {s(self.sK0)}, s57, {32*KVREC}
        s_mul_i32 s58, {s(S_I0)}, 1280
        s_mul_i32 s59, {s(S_I0)}, 320
        s_mul_i32 s63, {s(S_I0)}, 20
        s_lshr_b32 s60, s63, 6
        s_lshl_b32 s60, s60, 7
        s_add_u32 s60, s60, {WS_KV + 81920}
        v_and_b32 {v(t)}, 31, {v(VL)}
        v_lshrrev_b32 {v(t+1)}, 5, {v(VL)}
        v_and_b32 {v(t+2)}, 3, {v(VL)}
        v_bfe_u32 {v(t+3)}, {v(VL)}, 2, 1
        v_lshl_or_b32 {v(t+2)}, {v(t+3)}, 4, {v(t+2)}
        v_bfe_u32 {v(t+3)}, {v(VL)}, 3, 2
        v_lshl_or_b32 {v(t+2)}, {v(t+3)}, 2, {v(t+2)}
        s_add_u32 s61, s58, {WS_KV}
        v_lshl_add_u32 {v(t+2)}, {v(t+2)}, 3, s61
        v_lshl_add_u32 {v(self.vK0)}, {v(t+1)}, 8, {v(t+2)}
        v_add_u32 {v(t+2)}, 1024, {v(t+2)}
        v_mov_b32 {v(t+3)}, s60
        v_cmp_gt_u32 vcc, 32, {v(VL)}
        v_mul_u32_u24 {v(t+4)}, 10240, {v(t+1)}
        s_add_u32 s61, s59, {WS_KV + 40960}
        v_cndmask_b32 {v(self.vK1)}, {v(t+3)}, {v(t+2)}, vcc
        v_lshl_add_u32 {v(t+4)}, {v(t)}, 4, {v(t+4)}
        v_add_u32 {v(t+4)}, s61, {v(t+4)}
        v_cmp_gt_u32 vcc, 20, {v(t)}
        v_add_u32 {v(t+5)}, 20480, {v(t+4)}
        v_mov_b32 {v(self.idx)}, 0xdddddddd
        v_cndmask_b32 {v(self.vV0)}, {v(t+3)}, {v(t+4)}, vcc
        v_cndmask_b32 {v(self.vV1)}, {v(t+3)}, {v(t+5)}, vcc
        s_mov_b32 {s(self.sTry)}, 0
        """)
        for b in range(4):
            a(f"v_mov_b32 {v(self.Q[b]+4)}, 0\nv_mov_b32 {v(self.Q[b]+5)}, 0")
    def poll_qkv(self):
        a = self.a; t = self.t
        sk = a.label("nopoll"); q = a.label("pq"); go = a.label("pgo")
        a(f"""
        s_lshr_b32 s60, s63, 7
        s_add_u32 s61, s63, 19
        s_lshr_b32 s61, s61, 7
        s_sub_u32 s61, s61, s60
        v_bfe_u32 {v(t)}, {v(VL)}, 4, 1
        v_mul_u32_u24 {v(t)}, s61, {v(t)}
        v_add_u32 {v(t)}, s60, {v(t)}
        s_cmp_eq_u32 s56, s57
        s_cbranch_scc1 {sk}
        s_cmp_eq_u32 s57, 1
        s_cbranch_scc1 {q}
        v_lshrrev_b32 {v(t+1)}, 5, {v(VL)}
        v_mad_u32_u24 {v(t)}, {v(t+1)}, 5, {v(t)}
        v_add_u32 {v(t)}, 5, {v(t)}
        v_and_b32 {v(t+1)}, 15, {v(VL)}
        s_branch {go}
        {q}:
        v_and_b32 {v(t+1)}, 1, {v(VL)}
        s_lshl_b32 s60, {s(S_I1)}, 1
        v_add_u32 {v(t+1)}, s60, {v(t+1)}
        {go}:
        v_lshl_add_u32 {v(t)}, {v(t)}, 4, {v(t+1)}
        v_mul_u32_u24 {v(t)}, {FSTR}, {v(t)}
        v_add_u32 {v(t)}, {FL_QKV}, {v(t)}
        """)
        poll(a, t, t + 1, sleep=opt("psleep"))
        a(f"{sk}:\ns_waitcnt vmcnt(0)")
    def load_q(self):
        a = self.a; t = self.t
        a(f"""
        s_lshl_b32 s61, {s(S_I1)}, 1
        s_add_u32 s61, s61, s56
        s_mul_i32 s61, s61, {4*QREC}
        s_add_u32 s61, s61, s58
        v_lshlrev_b32 {v(t+6)}, 3, {v(VL)}
        """)
        for b in range(4):
            a(f"buffer_load_dwordx2 {v(self.Q[b],2)}, {v(t+6)}, {s(SW,4)}, s61 offen sc1")
            a(f"buffer_load_dwordx2 {v(self.Q[b]+2,2)}, {v(t+6)}, {s(SW,4)}, s61 offen offset:512 sc1")
            a("s_mov_b32 exec_hi, 0")
            a(f"buffer_load_dwordx2 {v(self.Q[b]+4,2)}, {v(t+6)}, {s(SW,4)}, s61 offen offset:1024 sc1")
            a("s_mov_b32 exec_hi, -1")
            if b < 3: a(f"s_add_u32 s61, s61, {QREC}")
    def kv_loads(self, slot, withv=True):
        K = self.K[slot]; V = self.V[slot]; W = s(SW, 4); so = s(self.sK)
        L = [f"buffer_load_dwordx2 {v(K,2)}, {v(self.vK0)}, {W}, {so} offen sc1",
             f"buffer_load_dwordx2 {v(K+2,2)}, {v(self.vK0)}, {W}, {so} offen offset:512 sc1",
             f"buffer_load_dwordx2 {v(K+4,2)}, {v(self.vK1)}, {W}, {so} offen sc1"]
        if withv:
            L += [f"buffer_load_dwordx4 {v(V,4)}, {v(self.vV0)}, {W}, {so} offen sc1",
                  f"buffer_load_dwordx4 {v(V+4,4)}, {v(self.vV1)}, {W}, {so} offen sc1"]
        L.append(f"s_add_u32 {so}, {so}, {KVREC}")
        return L
    def M8(self, b, slot):
        return f"v_mfma_f32_32x32x8_bf16 {v(self.S[b],16)}, {v(self.K[slot]+4,2)}, {v(self.Q[b]+4,2)}, 0"
    def M16(self, b, slot):
        return f"v_mfma_f32_32x32x16_bf16 {v(self.S[b],16)}, {v(self.K[slot],4)}, {v(self.Q[b],4)}, {v(self.S[b],16)}"
    def SM(self, b, slot, g):
        return f"v_smfmac_f32_32x32x32_bf16 {v(self.O[b],16)}, {v(self.V[slot]+4*g,4)}, {v(self.S[b]+8*g,8)}, {v(self.idx)}"
    def zero(self):
        a = self.a
        for b in range(4):
            for r in range(16): a(f"v_mov_b32 {v(self.O[b]+r)}, 0")
        for r in range(16): a(f"v_mov_b32 {v(self.S[3]+r)}, 0")
        for r in range(8): a(f"v_mov_b32 {v(self.V[NSL-1]+r)}, 0")
    def body(self, last):
        a = self.a; gate = opt("gate", 16)
        for st in range(NSL):
            for b in range(4):
                e = [f"v_exp_f32 {v(self.S[b]+r)}, {v(self.S[b]+r)}" for r in range(16)]
                nb = (b + 1) % 4; nsl = st if b < 3 else (st + 1) % NSL
                pb = (b - 1) % 4; psl = st if b > 0 else (st - 1) % NSL
                extra = []
                if b == 1 and not (last and st > 0): extra = self.kv_loads((st - 1) % NSL)
                if last and 4 * st + b == gate:
                    extra = extra + [f"ds_write_b32 {v(VBW)}, {v(self.idx)} offset:32"]
                fin = last and st == NSL - 1 and b == 3
                if b == 3 and not fin:
                    a(f"s_waitcnt vmcnt({5*(NSL-2) if not last else 5*max(0, NSL-2-st)})")
                seq = ([] if fin else [self.M8(nb, nsl)]) + e[0:4] + ([] if fin else [self.M16(nb, nsl)]) + e[4:7] + [self.SM(pb, psl, 0)] + e[7:10] + [self.SM(pb, psl, 1)] + extra + e[10:16]
                for x in seq: a(x)
    def main(self):
        a = self.a
        a(f"s_mov_b32 {s(self.sK)}, {s(self.sK0)}")
        for sl in range(NSL - 1):
            for x in self.kv_loads(sl): a(x)
        a(f"s_mov_b32 {s(self.sCnt)}, {32//NSL - 1}")
        a(f"s_waitcnt vmcnt({5*(NSL-2)})")
        stamp(a, 5)
        a(self.M8(0, 0)); a(self.M16(0, 0))
        a("s_nop 10")
        loop = a.label("attn")
        a(f".p2align 3\n{loop}:")
        self.body(False)
        a(f"s_sub_u32 {s(self.sCnt)}, {s(self.sCnt)}, 1\ns_cmp_lg_u32 {s(self.sCnt)}, 0\ns_cbranch_scc1 {loop}")
        self.body(True)
        if opt("gate", 16) >= 16: a(f"ds_write_b32 {v(VBW)}, {v(self.idx)} offset:32")
        a("s_nop 1")
        a(self.SM(3, NSL - 1, 0)); a(self.SM(3, NSL - 1, 1))
    def maxpass(self):
        a = self.a; t = self.t
        a(f"s_mov_b32 {s(self.sK)}, {s(self.sK0)}")
        for b in range(4): a(f"v_mov_b32 {v(self.M+b)}, 0xff800000")
        a(f"s_mov_b32 {s(self.sCnt)}, 32")
        loop = a.label("maxp")
        a(f"{loop}:")
        for x in self.kv_loads(0, withv=False): a(x)
        a("s_waitcnt vmcnt(0)")
        for b in range(4): a(self.M8(b, 0)); a(self.M16(b, 0))
        a("s_nop 11")
        for b in range(4):
            for r in range(0, 16, 2):
                a(f"v_max3_f32 {v(self.M+b)}, {v(self.S[b]+r)}, {v(self.S[b]+r+1)}, {v(self.M+b)}")
        a(f"s_sub_u32 {s(self.sCnt)}, {s(self.sCnt)}, 1\ns_cmp_lg_u32 {s(self.sCnt)}, 0\ns_cbranch_scc1 {loop}")
        a(f"""
        s_lshl_b32 s61, {s(S_W)}, 10
        s_add_u32 s61, s61, {L_ARED}
        v_lshl_add_u32 {v(t)}, {v(VL)}, 4, s61
        ds_write_b128 {v(t)}, {v(self.M,4)}
        s_waitcnt lgkmcnt(0)
        """)
        self.bar(count=False)
        S = self.S[0]
        a(f"""
        v_and_b32 {v(t)}, 31, {v(VL)}
        s_lshl_b32 s61, s56, 10
        s_add_u32 s61, s61, {L_ARED}
        v_lshl_add_u32 {v(t)}, {v(t)}, 4, s61
        ds_read_b128 {v(S,4)}, {v(t)}
        ds_read_b128 {v(S+4,4)}, {v(t)} offset:512
        ds_read_b128 {v(S+8,4)}, {v(t)} offset:2048
        ds_read_b128 {v(S+12,4)}, {v(t)} offset:2560
        s_waitcnt lgkmcnt(0)
        """)
        self.bar(count=False)
        a("s_mov_b32 exec_lo, 0")
        for b in range(4):
            m = self.M + b
            a(f"""
            v_max3_f32 {v(m)}, {v(S+b)}, {v(S+4+b)}, {v(S+8+b)}
            v_max_f32 {v(m)}, {v(m)}, {v(S+12+b)}
            v_sub_f32 {v(m)}, 0, {v(m)}
            v_and_b32 {v(t)}, 0xffff0000, {v(m)}
            v_sub_f32 {v(t+1)}, {v(m)}, {v(t)}
            v_and_b32 {v(t+2)}, 0xffff0000, {v(t+1)}
            v_sub_f32 {v(t+1)}, {v(t+1)}, {v(t+2)}
            v_lshrrev_b32 {v(t)}, 16, {v(t)}
            v_or_b32 {v(self.Q[b]+4)}, {v(t)}, {v(t+2)}
            v_lshrrev_b32 {v(self.Q[b]+5)}, 16, {v(t+1)}
            """)
        a("s_mov_b32 exec_lo, -1")
    def epi_setup(self):
        a = self.a; t = self.t; w = self.wo; WB = 6656
        a(f"""
        s_mul_i32 s61, {s(S_W)}, {WB}
        s_add_u32 s61, s61, {L_ARED}
        s_xor_b32 s62, {s(S_W)}, 2
        s_mul_i32 s62, s62, {WB}
        s_add_u32 s62, s62, {L_ARED}
        v_lshl_add_u32 {v(w)}, {v(VL)}, 4, s61
        v_lshl_add_u32 {v(w+1)}, {v(VL)}, 2, s61
        v_lshl_add_u32 {v(w+2)}, {v(VL)}, 4, s62
        v_lshl_add_u32 {v(w+3)}, {v(VL)}, 2, s62
        s_lshl_b32 s64, {s(S_I1)}, 1
        s_add_u32 s64, s64, s56
        s_lshl_b32 s64, s64, 1
        s_add_u32 s64, s64, s57
        s_mul_i32 s64, s64, {4*OREC}
        s_add_u32 s64, s64, {WS_O}
        s_add_u32 s65, s64, {2*OREC}
        v_bfe_u32 {v(t)}, {v(VL)}, 4, 1
        v_mul_u32_u24 {v(t)}, {OREC}, {v(t)}
        v_and_b32 {v(t+1)}, 15, {v(VL)}
        v_lshrrev_b32 {v(t+2)}, 5, {v(VL)}
        v_lshl_add_u32 {v(t+2)}, {v(t+2)}, 8, {v(t)}
        v_lshl_add_u32 {v(t+2)}, {v(t+1)}, 4, {v(t+2)}
        s_lshl_b32 s61, {s(S_I0)}, 9
        v_add_u32 {v(w+4)}, s61, {v(t+2)}
        v_lshl_add_u32 {v(t+3)}, {v(t+1)}, 3, {v(t)}
        s_lshl_b32 s61, {s(S_I0)}, 7
        s_add_u32 s61, s61, 16384
        v_add_u32 {v(w+5)}, s61, {v(t+3)}
        """)
    def reduce_store(self, lab_retry):
        a = self.a; t = self.t; w = self.wo
        l1 = a.label("red1"); l2 = a.label("red2")
        a(f"s_cmp_eq_u32 s57, 0\ns_cbranch_scc0 {l1}")
        for kh in range(2):
            if kh: a(f"{l1}:")
            for i in range(2):
                O = self.O[2 * (1 - kh) + i]
                for g in range(3):
                    a(f"ds_write_b128 {v(w)}, {v(O+4*g,4)} offset:{3328*i + 1024*g}")
                a(f"ds_write_b32 {v(w+1)}, {v(O+12)} offset:{3328*i + 3072}")
            self.bar(count=(kh == 0))
            for i in range(2):
                a(f"ds_read_b32 {v(self.S[i]+12)}, {v(w+3)} offset:{3328*i + 3072}")
                for g in range(3):
                    a(f"ds_read_b128 {v(self.S[i]+4*g,4)}, {v(w+2)} offset:{3328*i + 1024*g}")
            for i in range(2):
                O = self.O[2 * kh + i]
                a(f"s_waitcnt lgkmcnt({4*(1-i)})")
                a(f"v_add_f32 {v(self.S[i]+12)}, {v(self.S[i]+12)}, {v(O+12)}")
                a(f"v_rcp_f32 {v(self.S[i]+13)}, {v(self.S[i]+12)}")
                for r in range(12): a(f"v_add_f32 {v(self.S[i]+r)}, {v(self.S[i]+r)}, {v(O+r)}")
            if not kh: a(f"s_branch {l2}")
        a(f"{l2}:")
        for i in range(2):
            P = self.S[2] + 8 * i
            for r in range(12): a(f"v_mul_f32 {v(self.S[i]+r)}, {v(self.S[i]+r)}, {v(self.S[i]+13)}")
            for r in range(6): a(f"v_cvt_pk_bf16_f32 {v(P+r)}, {v(self.S[i]+2*r)}, {v(self.S[i]+2*r+1)}")
            a(f"buffer_store_dwordx4 {v(P,4)}, {v(w+4)}, {s(SW,4)}, {s(64+i)} offen sc1")
            a("s_mov_b32 exec_hi, 0")
            a(f"buffer_store_dwordx2 {v(P+4,2)}, {v(w+5)}, {s(SW,4)}, {s(64+i)} offen sc1")
            a("s_mov_b32 exec_hi, -1")
        a(f"""
        v_min_f32 {v(t+4)}, {v(self.S[0]+12)}, {v(self.S[1]+12)}
        v_max_f32 {v(t+5)}, {v(self.S[0]+12)}, {v(self.S[1]+12)}
        v_add_f32 {v(t+6)}, {v(self.S[0]+12)}, {v(self.S[1]+12)}
        """)
        for i in range(2):
            for r in range(12):
                a(f"v_fma_f32 {v(t+6)}, {v(self.S[i]+r)}, 0, {v(t+6)}")
        a(f"""
        v_cmp_nle_f32 vcc, 0x2f800000, {v(t+4)}
        s_mov_b64 s[62:63], vcc
        v_cmp_nge_f32 vcc, 0x5f800000, {v(t+5)}
        s_or_b64 s[62:63], s[62:63], vcc
        v_cmp_u_f32 vcc, {v(t+6)}, {v(t+6)}
        s_or_b64 s[62:63], s[62:63], vcc
        s_cselect_b32 s61, 1, 0
        v_mov_b32 {v(t+4)}, s61
        ds_write_b32 {v(VBW)}, {v(t+4)} offset:48
        s_waitcnt vmcnt(0)
        """)
        self.bar()
        a(f"""
        ds_read_b32 {v(t+4)}, {v(VBR)} offset:48
        s_waitcnt lgkmcnt(0)
        v_cmp_lt_u32 vcc, {s(self.sTry)}, {v(t+4)}
        s_cbranch_vccnz {lab_retry}
        """)

def wo_addr(a, vo, t, S):
    a.srd(S, P_WO, 640 * 1280)
    for i in range(5):
        a(f"""
        v_add_u32 {v(t)}, {64*i}, {v(VL)}
        v_mul_u32_u24 {v(t+1)}, 6554, {v(t)}
        v_lshrrev_b32 {v(t+1)}, 16, {v(t+1)}
        v_mul_u32_u24 {v(t+1)}, {1280-160}, {v(t+1)}
        v_lshl_add_u32 {v(vo+i)}, {v(VL)}, 4, {v(t+1)}
        """)
    a(f"v_add_u32 {v(vo+4)}, 4096, {v(vo+4)}")
def wo_load(a, vo, S, s_ct, groups):
    a(f"""
    s_mul_i32 s60, {s(s_ct)}, 160
    s_mul_i32 s61, {s(S_W)}, {32*1280}
    s_add_u32 s60, s60, s61
    s_add_u32 s60, s60, {groups[0]*128*1280}
    s_mul_i32 s61, {s(S_W)}, 5120
    """)
    for g in groups:
        a(f"s_add_u32 m0, s61, {L_WO + g*20480}\ns_nop 0")
        for i in range(4):
            a(f"buffer_load_dwordx4 {v(vo+i)}, {s(S,4)}, s60 offen offset:{1024*i} lds")
        a(f"s_add_u32 m0, s61, {L_WO + g*20480 + 4096}\ns_nop 0")
        a(f"buffer_load_dwordx4 {v(vo+4)}, {s(S,4)}, s60 offen lds")
        if g != groups[-1]: a(f"s_add_u32 s60, s60, {128*1280}")

class A3:
    def __init__(self, a):
        self.a = a
        R = Regs(16)
        self.aw = R.alloc("aw", 4); self.t = R.alloc("t", 4)
        self.Of = R.alloc("Of", 80, 4)
        self.W = [R.alloc(f"W{i}", 20, 4) for i in range(3)]
        self.acc = R.alloc("acc", 20, 4)
        self.SO = 52
    def setup(self):
        a = self.a; t = self.t; aw = self.aw
        a.srd(self.SO, P_OUT, 2048 * 5120)
        a(f"""
        v_bfe_u32 {v(t)}, {v(VL)}, 2, 2
        v_bfe_u32 {v(t+1)}, {v(VL)}, 4, 1
        v_lshl_add_u32 {v(t+1)}, {v(t+1)}, 2, {v(t)}
        v_lshrrev_b32 {v(t+2)}, 5, {v(VL)}
        v_mad_u32_u24 {v(t+1)}, {v(t+2)}, 20, {v(t+1)}
        v_mul_u32_u24 {v(t+1)}, 160, {v(t+1)}
        v_and_b32 {v(t+3)}, 3, {v(VL)}
        v_lshlrev_b32 {v(t+3)}, 3, {v(t+3)}
        v_add_u32 {v(t+3)}, {L_WO}, {v(t+3)}
        v_add_u32 {v(aw)}, {v(t+1)}, {v(t+3)}
        v_add_u32 {v(aw+1)}, 51200, {v(aw)}
        v_lshrrev_b32 {v(t+2)}, 4, {v(VL)}
        v_mad_u32_u24 {v(t+1)}, {v(t+2)}, 20, {v(t)}
        v_add_u32 {v(t+1)}, 16, {v(t+1)}
        v_mul_u32_u24 {v(t+1)}, 160, {v(t+1)}
        v_add_u32 {v(aw+2)}, {v(t+1)}, {v(t+3)}
        v_add_u32 {v(aw+3)}, 51200, {v(aw+2)}
        s_lshl_b32 s56, {s(S_I0)}, 2
        s_add_u32 s56, s56, {s(S_W)}
        s_mul_i32 s57, s56, {OREC}
        s_add_u32 s57, s57, {WS_O}
        s_mul_i32 s58, s56, {16*5120}
        s_mul_i32 s59, {s(S_I1)}, 320
        s_add_u32 s58, s58, s59
        v_lshlrev_b32 {v(t)}, 4, {v(VL)}
        v_lshlrev_b32 {v(t+1)}, 3, {v(VL)}
        v_and_b32 {v(t+3)}, 15, {v(VL)}
        v_mul_u32_u24 {v(t+3)}, 5120, {v(t+3)}
        v_lshl_add_u32 {v(t+2)}, {v(t+2)}, 4, {v(t+3)}
        """)
    def poll_o(self):
        a = self.a; sk = a.label("nopo")
        a(f"""
        s_cmp_lg_u32 {s(S_W)}, 1
        s_cbranch_scc1 {sk}
        s_lshr_b32 s60, {s(S_I0)}, 2
        s_mul_i32 s60, s60, {32*FSTR}
        s_add_u32 s60, s60, {FL_O}
        v_and_b32 v6, 31, {v(VL)}
        v_mul_u32_u24 v6, {FSTR}, v6
        v_add_u32 v6, s60, v6
        """)
        poll(a, 6, 7)
        a(f"{sk}:\ns_waitcnt vmcnt(0)")
    def load_o(self):
        a = self.a; t = self.t
        for st in range(16):
            if st and st % 4 == 0: a("s_add_u32 s57, s57, 4096")
            a(f"buffer_load_dwordx4 {v(self.Of+4*st,4)}, {v(t)}, {s(SW,4)}, s57 offen offset:{1024*(st%4)} sc1")
        a("s_add_u32 s57, s57, 4096")
        for st in range(4):
            for j in range(2):
                a(f"buffer_load_dwordx2 {v(self.Of+64+4*st+2*j,2)}, {v(t+1)}, {s(SW,4)}, s57 offen offset:{1024*st+512*j} sc1")
    def wreads(self, st):
        W = self.W[st % 3]; out = []
        for i in range(5):
            for j in range(2):
                if st < 16: off = st * 6400 + j * 1280 + i * 32; r = self.aw
                else: off = (st - 16) * 25600 + j * 12800 + i * 32; r = self.aw + 2
                if off >= 51200: off -= 51200; r += 1
                out.append(f"ds_read_b64_tr_b16 {v(W+4*i+2*j,2)}, {v(r)} offset:{off}")
        return out
    def pre(self):
        for st in range(2):
            for x in self.wreads(st): self.a(x)
    def compute(self):
        a = self.a
        for st in range(20):
            nv = (24 - (st + 1)) if st < 16 else (24 - (16 + 2 * (st - 15)))
            a(f"s_waitcnt vmcnt({nv}) lgkmcnt({10 if st < 19 else 0})")
            rd = self.wreads(st + 2) if st < 18 else []
            W = self.W[st % 3]
            for i in range(5):
                d = self.acc + 4 * i
                a(f"v_mfma_f32_16x16x32_bf16 {v(d,4)}, {v(W+4*i,4)}, {v(self.Of+4*st,4)}, {'0' if st == 0 else v(d,4)}")
                for x in rd[2*i:2*i+2]: a(x)
        a("s_nop 7")
        for i in range(5):
            a(f"buffer_store_dwordx4 {v(self.acc+4*i,4)}, {v(self.t+2)}, {s(self.SO,4)}, s58 offen offset:{64*i}")
```

```python
import sys
from fcommon import *
from fl import *
from fm import *
NAME = "concat_heads__mha_block__ssm_conv_s5__prompt_kernel"
S_IDLE = 66
NY = NRING
def role_y(a):
    bar = SwBar(a)
    m = MRegs()
    B = B1(a, bar, m); C = B2(a, bar)
    L = Loader(a, m.F, m.F + 8, m.F + 16)
    G = {}
    L.ld_valu()
    a("s_waitcnt lgkmcnt(0)")
    L.ld_srd()
    seq = []; nxt = [0]
    def issue_half():
        st, h = divmod(nxt[0], 2)
        if nxt[0] == 20:
            a("Lli2:"); L.b1_srd()
        seq.extend([st] * L.half(st, h)); nxt[0] += 1
    def younger(st): return seq[::-1].index(st)
    a(f"s_cmp_lg_u32 {s(S_IDLE)}, 0\ns_cbranch_scc1 Lli0")
    for i in range(4): issue_half()
    a("Lli0:")
    stamp(a, 1)
    swbar_setup(a, 1)
    a.srd(SW, P_WS, WS_END); a.srd(SD, P_DBG, 256)
    a("s_cmp_lg_u32 s2, 255\ns_cbranch_scc1 Lnn")
    make_nonce(a, m.acc, "Lnn")
    a("Lnn:")
    n = opt("idlepf", 8)
    if n:
        D = m.acc
        a(f"""
        s_cmp_eq_u32 {s(S_IDLE)}, 0
        s_cbranch_scc1 Lnoipf
        s_bfe_u32 s60, s2, 0x10003
        s_lshl_b32 s60, s60, 2
        s_add_u32 s60, s60, {s(S_W)}
        s_and_b32 s61, s2, 7
        v_lshlrev_b32 v6, 7, {v(VL)}
        s_and_b32 s6, s61, 1
        s_lshl_b32 s6, s6, 2
        s_lshr_b32 s7, s61, 1
        s_add_u32 s6, s6, s7
        s_mul_i32 s6, s6, {80*1280}
        s_and_b32 s7, s60, 3
        s_mul_i32 s7, s7, {200*128}
        s_add_u32 s6, s6, s7
        s_cmp_lt_u32 s60, 4
        s_cselect_b32 s52, {s(P_BRE)}, {s(P_BIM)}
        s_cselect_b32 s53, {s(P_BRE+1)}, {s(P_BIM+1)}
        s_mov_b32 s54, {640*1280}
        """)
        for i in range(3):
            a(f"buffer_load_dword {v(D+4+i)}, v6, s[52:55], s6 offen\ns_add_u32 s6, s6, 8192")
        a(f"s_mov_b64 exec, 0xff\nbuffer_load_dword {v(D+7)}, v6, s[52:55], s6 offen\ns_mov_b64 exec, -1")
        a(f"s_mul_i32 s6, s61, {256*1280}\ns_mul_i32 s7, s60, {5*8192}\ns_add_u32 s6, s6, s7")
        a.srd(52, P_BX, 2048 * 1280)
        for i in range(n - 4):
            a(f"buffer_load_dword {v(D+8+i)}, v6, s[52:55], s6 offen\ns_add_u32 s6, s6, 8192")
        a("Lnoipf:")
    setups = [L.b1_setup, B.gemm_setup, B.cprep_addr, B.scan_setup, B.craw_addr, lambda: wo_addr(a, C.wo, 6, C.SWO), lambda: (C.setup(), C.poll_addr(), C.wo_setup())]
    for f in setups: f()
    a(f"""
    s_lshl_b32 s64, {s(S_I1)}, 4
    s_add_u32 s64, s64, {s(S_I0)}
    s_mul_i32 s64, s64, {FSTR}
    s_add_u32 s64, s64, {FL_QKV}
    """)
    a(f"s_cmp_eq_u32 {s(S_IDLE)}, 0\ns_cbranch_scc1 Lli1")
    mark = len(a.lines)
    stamp(a, 2)
    a("s_branch Lli2\nLli1:")
    Q0 = opt("q0", 3); nbar = 0
    def interval(free_upto, quota):
        k = 0
        while k < quota and nxt[0] < 2 * (10 + NY) and nxt[0] // 2 <= free_upto:
            if nxt[0] == 20: a.lines[mark:mark] = ["    s_barrier"] * nbar
            issue_half(); k += 1
    for st in range(10):
        a(f"s_waitcnt vmcnt({younger(st)})\ns_barrier"); nbar += 1
        if st == 0: stamp(a, 2)
        interval(st - 1 + NRING, 3 if st >= Q0 else 2)
        if st == 4 and opt("warm", 1): B.warm()
    a("s_barrier")
    interval(9 + NRING, 8)
    assert nxt[0] == 2 * (10 + NY)
    a(f"s_setprio {opt('gprio', 3)}")
    B.params2_read()
    def sync(st):
        if st < NY:
            a(f"s_waitcnt vmcnt({younger(10 + st)}) lgkmcnt(0)")
            bar()
            G[st] = bar.n
            if st == 0: stamp(a, 3)
            if st == NY - 1: nonce_load(a, 6)
        else:
            a("s_waitcnt lgkmcnt(0)\ns_barrier")
            if st == NY:
                a("s_waitcnt vmcnt(0)")
                nonce_finish(a, 6)
                a(f"s_cmp_lg_u32 {s(S_IDLE)}, 0\ns_cbranch_scc1 Lnoqf")
                set_flag(a, 64, 6, only_wave=0)
                a("Lnoqf:")
    ex = {g: [lambda g=g: B.params2(g)] for g in range(5)}
    B.gemm(sync, ex)
    stamp(a, 4)
    def mexit(k):
        if opt("mexit") == k:
            a(f"v_mov_b32 {v(VGEN)}, 60\nds_write_b32 {v(VBW)}, {v(VGEN)}\ns_waitcnt lgkmcnt(0)\ns_endpgm")
    mexit(1)
    a("s_setprio 3")
    B.exchange()
    G["ring"] = bar.n
    B.scan1()
    order = [3, 2, 1, 0]; n1, n2 = opt("wo1", 1), opt("wo2", 2)
    def wo(gs):
        if gs: a("s_setprio 0"); C.wo_paced(gs); a("s_setprio 3")
    C.wo_rest = order[n1 + n2:]
    B.serial(lambda: wo(order[:n1]))
    stamp(a, 5)
    B.scan2()
    a(f"""
    s_lshl_b32 s41, {s(S_TC)}, 3
    s_add_u32 s41, s41, {s(S_CG)}
    s_mul_i32 s41, s41, {FSTR}
    s_add_u32 s41, s41, {FL_H}
    """)
    a("s_waitcnt vmcnt(0)")
    bar(sleep=2)
    set_flag(a, 41, 6, only_wave=0)
    stamp(a, 6)
    wo(order[n1:n1 + n2])
    C.poll()
    mexit(2)
    a(f"s_setprio {opt('gprio2', 0)}")
    def gate():
        stamp(a, 7)
        lds_wait(a, "1", off=16, sleep=opt("gsleep", 4), addr=VBW)
    C.gemm(gate)
    G["wo"] = C.G_WO
    a(f"s_setprio {opt('eprio', 0)}")
    stamp(a, 8)
    mexit(3)
    C.epi()
    stamp(a, 9)
    if STAMPS: a("s_waitcnt vmcnt(0)")
    stamp(a, 10); stamp_dump(a, range(0, 12))
    a("Lend:\ns_endpgm")
    return G
def role_x(a, G):
    bar = SwBar(a)
    T = A2(a, bar); A = A1(a, T)
    L = Loader(a, 0, A.end, T.S[1]); L.SX, L.SB = 48, 8
    Pm = Params1(a, T.S[2])
    swbar_setup(a, 0)
    a(f"v_and_b32 v6, 31, {v(VL)}\nv_lshlrev_b32 v6, 2, v6\nds_write_b32 v6, {v(VGEN)} offset:{L_BAR}")
    a("s_waitcnt lgkmcnt(0)")
    Pm.params_load()
    a.srd(SW, P_WS, WS_END); a.srd(SD, P_DBG, 256)
    A.setup(); L.b1_setup(); L.b1_srd()
    a(f"""
    s_add_u32 s40, s40, {NY}
    s_sub_u32 s6, s40, 10
    s_cmp_ge_u32 s40, 10
    s_cselect_b32 s40, s6, s40
    s_mov_b32 s30, {s(S_I0)}
    s_mov_b32 s31, {s(S_I1)}
    s_and_b32 {s(S_I0)}, s2, 7
    s_lshl_b32 {s(S_I0)}, {s(S_I0)}, 2
    s_bfe_u32 s6, s2, 0x20003
    s_add_u32 {s(S_I0)}, {s(S_I0)}, s6
    s_lshr_b32 {s(S_I1)}, s2, 5
    """)
    T.setup(); T.epi_setup(); T.poll_addr(); T.zero_o()
    a("s_waitcnt vmcnt(0)")
    Pm.params1()
    a(f"""
    s_cmp_lg_u32 {s(S_IDLE)}, 0
    s_waitcnt lgkmcnt(0)
    s_cbranch_scc1 Lidle
    s_cmp_ge_u32 s31, 10
    s_cbranch_scc1 Lvtile
    """)
    A.mt, A.nt = 30, 31
    A.loop(0); stamp(a, 2)
    A.epilogue(0)
    a("s_branch Lafter")
    a("Lidle:")
    for i in range(11): a("s_barrier")
    nonce_load(a, A.nn)
    stamp(a, 1); stamp(a, 2)
    a("s_branch Lafter")
    a("Lvtile:")
    A.loop(1); stamp(a, 2)
    A.epilogue(1)
    a("Lafter:")
    stamp(a, 11)
    F0 = 10 + NY
    for k in range(2):
        lds_wait(a, str(G[k + 1]), off=16)
        L.half(F0 + k, 0); L.half(F0 + k, 1)
    T.zero_q(); T.zero_s()
    for st in range(F0, 20):
        a(f"s_waitcnt vmcnt({7 if st < 19 else 0})")
        if st == 19: break
        if st == F0: nonce_finish(a, A.nn)
        a("s_barrier")
        if st + 2 < 20: L.half(st + 2, 0); L.half(st + 2, 1)
        if st == opt('p1', 18): T.poll_first()
    stamp(a, 3)
    a("s_setprio 2")
    T.poll_finish()
    stamp(a, 4)
    a("Lmain:")
    T.main()
    stamp(a, 6)
    if NRING != 3: lds_wait(a, str(G["ring"]), off=16)
    a("s_nop 9")
    T.reduce_store("Lretry")
    wo_addr(a, 8, 14, 48)
    wo_load(a, 8, 48, S_I1, [4])
    P = A3(a, bar)
    P.setup()
    lds_wait(a, str(G["wo"]), off=16)
    P.pre()
    P.poll_o()
    bar()
    stamp(a, 8)
    P.compute()
    stamp(a, 9)
    if STAMPS: a("s_waitcnt vmcnt(0)")
    stamp(a, 10); stamp_dump(a, range(0, 12))
    a("s_endpgm")
    a("Lretry:")
    a(f"s_mov_b32 {s(T.sTry)}, 1")
    T.maxpass()
    T.zero_o(); T.zero_s()
    a("s_branch Lmain")
def gen():
    a = Asm()
    stamp(a, 0)
    a(f"""
    s_load_dwordx16 s[8:23], s[0:1], 0
    s_load_dwordx8 s[24:31], s[0:1], 64
    s_load_dwordx4 s[32:35], s[0:1], 96
    s_load_dwordx2 s[36:37], s[0:1], 112
    s_cmp_ge_u32 s2, 256
    s_cbranch_scc1 Lend
    v_lshrrev_b32 v2, 6, v0
    v_and_b32 {v(VL)}, 63, v0
    v_readfirstlane_b32 {s(S_WAVE)}, v2
    s_lshr_b32 s40, s2, 3
    s_cmp_ge_u32 s40, 30
    s_cselect_b32 {s(S_IDLE)}, 1, 0
    s_and_b32 s41, s2, 1
    s_mul_i32 s6, s41, 30
    s_add_u32 s40, s40, s6
    s_lshr_b32 {s(S_I1)}, s40, 2
    s_and_b32 s40, s40, 3
    s_bfe_u32 s6, s2, 0x20001
    s_lshl_b32 s7, s6, 2
    s_add_u32 {s(S_I0)}, s40, s7
    s_lshl_b32 s6, s6, 3
    s_bfe_u32 s7, s2, 0x30003
    s_add_u32 {s(S_TC)}, s6, s7
    s_lshl_b32 s41, s41, 2
    s_bfe_u32 s7, s2, 0x20006
    s_add_u32 {s(S_CG)}, s41, s7
    s_and_b32 {s(S_W)}, {s(S_WAVE)}, 3
    s_cmp_lt_u32 {s(S_WAVE)}, 4
    s_cbranch_scc1 LroleX
    """)
    G = role_y(a)
    a(".p2align 6\nLroleX:")
    role_x(a, G)
    a("Lcode_end:")
    head = open("concat_heads__mha_block__ssm_conv_s5__prompt.s.ref").read().split("; Override launch")[0]
    return (head + f"; @launch grid=(256,1,1) block=(512,1,1) lds={LDS_TOTAL}\n" + '.amdgcn_target "amdgcn-amd-amdhsa--gfx950"\n'
            + kernel_header(NAME) + a.text() + kernel_desc(NAME, 256, 102))
if __name__ == "__main__":
    open(sys.argv[1], "w").write(gen())
```
